```python
import torch

def _softmax(x, axis=-1):
    return torch.softmax(x, dim=axis)
def _gelu(x):
    return torch.nn.functional.gelu(x, approximate="tanh")
def _silu(x):
    return torch.nn.functional.silu(x)
def _sigmoid(x):
    return torch.sigmoid(x)
def _layernorm(x, axis=-1, eps=1e-5):
    m = x.mean(dim=axis, keepdim=True)
    v = x.var(dim=axis, keepdim=True, unbiased=False)
    return (x - m) / torch.sqrt(v + eps)
def _scatter_add(tgt, idx, src, axis=0):
    return tgt.clone().index_add_(axis, idx, src)
def _segment_sum(src, seg, n):
    out = torch.zeros((n,) + src.shape[1:], dtype=src.dtype)
    return out.index_add_(0, seg, src)
def _pad(x, pw):
    flat = tuple(v for pair in reversed(pw) for v in pair)
    return torch.nn.functional.pad(x, flat)

kernel_name = 'gated_mix__linear_kernel_hedgehog__glu_gated_geglu__prompt'

def setup_inputs():

    _w = (lambda a: (lambda t: t.to(torch.bfloat16) if t.is_floating_point() else t)(torch.as_tensor(a)))
    def _A_setup():
        B, S, D, H = 1, 2048, 1024, 32
        Dh = D // H
        return {
            "x": _w((lambda *s: torch.randn(*s, dtype=torch.bfloat16) * 0.05)(B, S, D)),
            "wqkv": _w((lambda *s: torch.randn(*s, dtype=torch.bfloat16) * 0.8)(D, 3 * D)),
            "w_phi": _w((lambda *s: torch.randn(*s, dtype=torch.bfloat16) * 0.8)(H, Dh, Dh) * (Dh ** -0.5)),
            "wo": _w((lambda *s: torch.randn(*s, dtype=torch.bfloat16) * 0.05)(D, D)),
        }
    _A_in = _A_setup()

    def _B_setup():
        B, S, Dm, Df = 1, 2048, 1024, 3584
        return {
            "x": _w((lambda *s: torch.randn(*s, dtype=torch.bfloat16) * 0.05)(B, S, Dm)),
            "w_gate": _w((lambda *s: torch.randn(*s, dtype=torch.bfloat16) * 1.6)(Dm, Df) * (Dm ** -0.5)),
            "w_up": _w((lambda *s: torch.randn(*s, dtype=torch.bfloat16) * 1.6)(Dm, Df) * (Dm ** -0.5)),
            "w_down": _w((lambda *s: torch.randn(*s, dtype=torch.bfloat16) * 1.6)(Df, Dm) * (Df ** -0.5)),
        }
    _B_in = _B_setup()

    return {
        "A_x": _A_in["x"],
        "A_wqkv": _A_in["wqkv"],
        "A_w_phi": _A_in["w_phi"],
        "A_wo": _A_in["wo"],
        "B_x": _B_in["x"],
        "B_w_gate": _B_in["w_gate"],
        "B_w_up": _B_in["w_up"],
        "B_w_down": _B_in["w_down"],
        "gate_w": _w((lambda *s: torch.randn(*s, dtype=torch.bfloat16) * 0.05)(1024) * 16.0),
    }

def reference(A_x, A_wqkv, A_w_phi, A_wo, B_x, B_w_gate, B_w_up, B_w_down, gate_w):
    def _A_ref(x, wqkv, w_phi, wo):
        B, S, D = x.shape
        H = 32; Dh = D // H
        qkv = (lambda x, *d: x.permute(*d))((x @ wqkv).reshape(B, S, 3, H, Dh), 2, 0, 3, 1, 4)
        q, k, v = qkv[0], qkv[1], qkv[2]
        pq = torch.einsum("bhsd,hdf->bhsf", q, w_phi)
        pk = torch.einsum("bhsd,hdf->bhsf", k, w_phi)
        phi_q = torch.concatenate([_softmax(pq, axis=-1), _softmax(-pq, axis=-1)], axis=-1)
        phi_k = torch.concatenate([_softmax(pk, axis=-1), _softmax(-pk, axis=-1)], axis=-1)
        kv = torch.einsum("bhsf,bhsd->bhfd", phi_k, v)
        z  = torch.einsum("bhsf->bhf", phi_k)
        num = torch.einsum("bhqf,bhfd->bhqd", phi_q, kv)
        den = torch.einsum("bhqf,bhf->bhq", phi_q, z)[..., None] + 1e-6
        o = num / den
        return (lambda x, *d: x.permute(*d))(o, 0, 2, 1, 3).reshape(B, S, D) @ wo

    def _B_ref(x, w_gate, w_up, w_down):
        g = torch.einsum("bsd,df->bsf", x, w_gate)
        u = torch.einsum("bsd,df->bsf", x, w_up)
        h = _gelu(g) * u
        return torch.einsum("bsf,fd->bsd", h, w_down)

    x = A_x
    g = _sigmoid((x * gate_w).sum(-1, keepdims=True))
    a = _A_ref(x, A_wqkv, A_w_phi, A_wo)
    b = _B_ref(x, B_w_gate, B_w_up, B_w_down)
    return g * a + (1 - g) * b
```

```python
import re

REG_RE = re.compile(r'\b([vas])(?:\[(\d+):(\d+)\]|(\d+))')
TRANS = ('v_exp_f32', 'v_log_f32', 'v_rcp_f32', 'v_rsq_f32', 'v_sqrt_f32', 'v_sin_f32', 'v_cos_f32')


def regs_of(opnd):
    out = []
    for m in REG_RE.finditer(opnd):
        k = m.group(1)
        if m.group(2) is not None:
            out += [(k, i) for i in range(int(m.group(2)), int(m.group(3)) + 1)]
        else:
            out.append((k, int(m.group(4))))
    if re.search(r'\bvcc\b', opnd):
        out.append(('s', 'vcc'))
    if re.search(r'\bm0\b', opnd):
        out.append(('s', 'm0'))
    if re.search(r'\bexec\b', opnd):
        out.append(('s', 'exec'))
    return out


class Inst:
    __slots__ = ('op', 'kind', 'w', 'r', 'cin', 'ab', 'passes', 'dpp', 'text', 'wide_store', 'states')


def classify(text):
    t = text.strip()
    parts = t.split(None, 1)
    op = parts[0]
    rest = parts[1] if len(parts) > 1 else ''
    ops = [o.strip() for o in rest.split(',')]
    I = Inst()
    I.op = op
    I.text = t
    I.cin = []
    I.ab = []
    I.passes = 0
    I.dpp = 'row_' in rest or 'quad_perm' in rest or '_dpp' in op
    I.wide_store = False
    I.states = 1
    allr = regs_of(rest)
    if op == 's_nop':
        I.kind = 'nop'
        I.w, I.r = [], []
        I.states = int(rest, 0) + 1
    elif op.startswith('v_mfma'):
        I.kind = 'mfma'
        I.w = regs_of(ops[0])
        I.ab = regs_of(ops[1]) + regs_of(ops[2])
        I.cin = regs_of(ops[3])
        I.r = I.ab + I.cin
        I.passes = 8 if '32x32' in op else 4
    elif op.startswith(('buffer_store', 'global_store', 'ds_write')):
        I.kind = 'mem'
        I.w, I.r = [], allr
        if op.startswith(('buffer_store', 'global_store')) and ('x4' in op or 'x3' in op):
            I.wide_store = True
    elif op.startswith(('buffer_load', 'global_load')):
        I.kind = 'mem'
        if re.search(r'\blds\b', rest) or '_lds_' in op:
            I.w, I.r = [], allr + [('s', 'm0')]
            I.kind = 'dma'
        else:
            I.w = regs_of(ops[0])
            I.r = regs_of(','.join(ops[1:]))
            if 'd16' in op:
                I.r += I.w
    elif op.startswith('ds_read') or op.startswith('ds_bpermute') or op.startswith('ds_swizzle'):
        I.kind = 'mem'
        I.w = regs_of(ops[0])
        I.r = regs_of(','.join(ops[1:]))
    elif op.startswith('buffer_atomic') or op.startswith('global_atomic'):
        I.kind = 'mem'
        I.w, I.r = (regs_of(ops[0]) if 'sc0' in rest else []), allr
    elif op.startswith('v_'):
        I.kind = 'valu'
        if op.startswith('v_permlane') and 'swap' in op:
            I.w = allr
            I.r = allr
        elif op.startswith(('v_add_co', 'v_addc_co', 'v_sub_co', 'v_subb_co')):
            I.w = regs_of(ops[0]) + regs_of(ops[1])
            I.r = regs_of(','.join(ops[2:]))
        else:
            I.w = regs_of(ops[0])
            I.r = regs_of(','.join(ops[1:]))
            if op.startswith(('v_fmac', 'v_pk_fmac', 'v_dot2c')):
                I.r += I.w
            if op.startswith('v_cndmask') and len(ops) == 3:
                I.r.append(('s', 'vcc'))
    elif op.startswith('s_'):
        I.kind = 'salu'
        if op.startswith(('s_cmp', 's_waitcnt', 's_barrier', 's_branch', 's_cbranch', 's_endpgm', 's_setprio', 's_sleep')):
            I.w, I.r = [], allr
        else:
            I.w = regs_of(ops[0])
            I.r = regs_of(','.join(ops[1:]))
    else:
        raise ValueError('unknown instruction ' + t)
    return I


class Asm:
    def __init__(self):
        self.lines = []
        self.hist = []

    def raw(self, s):
        self.lines.append(s)

    def comment(self, s):
        self.lines.append('    ; ' + s)

    def label(self, name):
        self.lines.append(name + ':')

    def flush_hazards(self, n=12):
        need = 0
        d = 0
        for P in reversed(self.hist):
            if P.kind == 'mfma':
                need = max(need, (12 if P.passes == 8 else 8) - d)
            elif P.kind == 'valu':
                need = max(need, 5 - d)
            elif P.kind in ('salu',):
                need = max(need, 1 - d)
            elif P.wide_store:
                need = max(need, 2 - d)
            d += P.states
            if d > 16:
                break
        if need > 0:
            self._nop(need)

    def _nop(self, n):
        while n > 0:
            k = min(n, 16)
            I = classify('s_nop %d' % (k - 1))
            self.lines.append('    ' + I.text)
            self.hist.append(I)
            n -= k

    def need(self, C):
        need = 0
        d = 0
        cr, cw = set(C.r), set(C.w)
        for P in reversed(self.hist):
            pw = set(P.w)
            req = 0
            if P.kind == 'valu':
                vw = {x for x in pw if x[0] in 'va'}
                sw = {x for x in pw if x[0] == 's'}
                if C.kind == 'mfma' and vw & cr:
                    req = max(req, 2)
                if P.op.startswith('v_dot') and vw & (cr | cw) and C.op != P.op:
                    req = max(req, 3)
                if C.kind == 'valu':
                    if C.dpp and vw & cr:
                        req = max(req, 2)
                    if C.op.startswith('v_permlane') and vw & cr:
                        req = max(req, 2)
                    if C.op.startswith(('v_readlane', 'v_readfirstlane')) and vw & cr:
                        req = max(req, 1)
                    if P.op.startswith(TRANS) and not C.op.startswith(TRANS) and vw & (cr | cw):
                        req = max(req, 1)
                    if sw & cr:
                        req = max(req, 4 if C.op.startswith(('v_readlane', 'v_writelane')) else 2)
                    if ('op_sel' in P.text or 'sdwa' in P.text) and vw & (cr | cw):
                        req = max(req, 1)
                if C.kind in ('mem', 'dma') and sw & cr:
                    req = max(req, 5)
                if C.kind == 'salu' and sw & cr:
                    req = max(req, 1)
            elif P.kind == 'mfma':
                big = P.passes == 8
                if C.kind == 'mfma':
                    if pw & set(C.ab):
                        req = max(req, 12 if big else 8)
                    if pw & set(C.cin):
                        if set(C.cin) == pw and C.passes == P.passes:
                            req = max(req, 0)
                        else:
                            req = max(req, 10 if big else 6)
                elif C.kind == 'valu':
                    if pw & (cr | cw):
                        req = max(req, 12 if big else 8)
                    if set(P.cin) & cw:
                        req = max(req, 7 if big else 3)
                elif C.kind in ('mem', 'dma'):
                    if pw & (cr | cw):
                        req = max(req, 12 if big else 8)
            elif P.kind == 'salu':
                if ('s', 'm0') in pw and C.kind == 'dma':
                    req = max(req, 1)
            if P.wide_store and C.kind == 'valu' and set(P.r) & cw:
                req = max(req, 2)
            if P.wide_store and C.kind == 'mem' and set(P.r) & cw:
                req = max(req, 1)
            need = max(need, req - d)
            d += P.states
            if d > 16:
                break
        return need

    def __call__(self, text):
        for t in text.strip().split('\n'):
            t = t.strip()
            if not t:
                continue
            if t.startswith(';'):
                self.lines.append('    ' + t)
                continue
            C = classify(t)
            n = self.need(C)
            if n > 0:
                self._nop(n)
            self.lines.append('    ' + C.text)
            self.hist.append(C)
            if len(self.hist) > 40:
                self.hist = self.hist[-24:]

    def text(self):
        return '\n'.join(self.lines) + '\n'


def kd(name, vgpr, accum, sgpr=102):
    return f'''.section .rodata,"a"
.p2align 6
.amdhsa_kernel {name}
  .amdhsa_next_free_vgpr {vgpr}
  .amdhsa_next_free_sgpr {sgpr}
  .amdhsa_accum_offset {accum}
  .amdhsa_group_segment_fixed_size 0
  .amdhsa_kernarg_size 96
  .amdhsa_user_sgpr_count 2
  .amdhsa_user_sgpr_kernarg_segment_ptr 1
  .amdhsa_system_sgpr_workgroup_id_x 1
.end_amdhsa_kernel
'''
```

```python
from asmlib import Asm

WS_A = 0
WS_Q = 0x1400000
WS_KV = 0x1800000
WS_G = 0x1C00000
WS_BYTES = 0x2000000

X_BASE = 0
GU_BASE = 65536
QKV_BASE = GU_BASE + 4 * 14336
SPARE = QKV_BASE + 4 * 6144
K1_LDS = 163840

C1 = -2.0 * 0.7978845608028654 * 1.4426950408889634
C2 = C1 * 0.044715
LOG2E = 1.4426950408889634

import struct
def f2u(f):
    return '0x%08x' % struct.unpack('<I', struct.pack('<f', f))[0]


def gen_k1(name, MT=4, opts=None):
    opts = opts or {}
    NW = 32 // MT
    WM = NW // 2
    XL = 16 // NW
    A = Asm()
    nacc = 40 * MT
    if MT == 4:
        accum_off = 172
        def acc(nt, t):
            return ('v', (t * 10 + nt) * 4)
        misc = 160
        a_A = [0, 16]
        a_B = 32
        a_BX = [60, 72]
        nvgpr = 256
    else:
        accum_off = 256
        def acc(nt, t):
            i = t * 10 + nt
            return ('v', i * 4) if i < 60 else ('a', (i - 60) * 4)
        misc = 240
        a_A = [80, 112]
        a_B = 144
        a_BX = [172, 184]
        nvgpr = 512
    vXR, vGU, vQE, vQO, vDX = misc, misc + 1, misc + 2, misc + 3, misc + 4
    vDW = [misc + 5 + i for i in range(5)]
    vT = [misc + 8, misc + 9, misc + 10, misc + 11] if MT == 4 else [misc + 10, misc + 11, misc + 12, misc + 13, misc + 14, misc + 15]

    def R(kr, n=4):
        k, i = kr
        return f'{k}[{i}:{i + n - 1}]'

    def Breg(jt, par):
        if jt < 7:
            return a_B + 4 * jt
        return a_BX[par] + 4 * (jt - 7)

    A.raw(f'.globl {name}\n.p2align 8\n.type {name},@function\n{name}:')
    A('s_cmp_ge_u32 s2, 256')
    A(f's_cbranch_scc1 {name}_end')
    A('s_load_dwordx4 s[4:7], s[0:1], 0')
    A('s_load_dwordx2 s[8:9], s[0:1], 16')
    A('s_load_dwordx4 s[12:15], s[0:1], 40')
    A('s_load_dwordx2 s[10:11], s[0:1], 88')
    A('v_lshrrev_b32 v1, 6, v0')
    A('v_and_b32 v0, 63, v0')
    A('v_readfirstlane_b32 s87, v1')
    A('s_and_b32 s90, s2, 7')
    A('s_lshr_b32 s91, s2, 3')
    A('s_and_b32 s92, s91, 3')
    A('s_lshl_b32 s85, s90, 2')
    A('s_add_u32 s85, s85, s92')
    A('s_lshr_b32 s86, s91, 2')
    A(f's_and_b32 s88, s87, {WM - 1}')
    A(f's_lshr_b32 s89, s87, {WM.bit_length() - 1}')
    A('s_waitcnt lgkmcnt(0)')
    A('s_mov_b32 s16, s4\ns_mov_b32 s17, s5\ns_mov_b32 s18, 0x400000\ns_mov_b32 s19, 0x00020000')
    A(f's_mov_b32 s40, s10\ns_mov_b32 s41, s11\ns_mov_b32 s42, {WS_BYTES}\ns_mov_b32 s43, 0x00020000')
    A('s_mov_b32 s44, s8\ns_mov_b32 s45, s9\ns_mov_b32 s46, 65536\ns_mov_b32 s47, 0x00020000')
    A('v_and_b32 v2, 15, v0')
    A('v_lshrrev_b32 v3, 4, v0')
    A('v_lshlrev_b32 v4, 8, v3')
    A('v_lshl_add_u32 v4, v2, 1, v4')
    A('s_lshl_b32 s90, s85, 11')
    for ft in range(2):
        for jj in range(8):
            d = 16 * (jj >> 2) + (jj & 3)
            off = d * 64 + ft * 32
            reg = 108 + ft * 8 + jj
            A(f'buffer_load_ushort v{reg}, v4, s[44:47], s90 offen offset:{off}')
    A('v_lshrrev_b32 v5, 2, v0')
    A('v_lshrrev_b32 v6, 4, v0')
    A('v_and_b32 v6, 2, v6')
    A('v_and_b32 v7, 3, v0')
    A('v_xor_b32 v7, v7, v6')
    A('v_lshlrev_b32 v7, 4, v7')
    A(f'v_lshl_add_u32 v{vDX}, v5, 11, v7')
    A('s_lshl_b32 s90, s86, 19')
    A(f's_mul_i32 s91, s87, {XL * 16 * 2048}')
    A('s_add_u32 s48, s90, s91')
    for q in range(1, XL):
        A(f's_add_u32 s{48 + q}, s48, {q * 32768}')
    A(f's_mul_i32 s62, s87, {XL * 1024}')
    def sel(d, a, b):
        A(f's_mov_b32 {d}, {b}')
        A(f's_cselect_b32 {d}, {a}, {d}')
    NWS = 3 if MT == 4 else 5
    for q in range(NWS):
        srd = 20 + 4 * q
        if MT == 4:
            A(f's_mul_i32 s90, s87, 3')
            A(f's_add_u32 s90, s90, {q}')
            A(f's_lshl_b32 s91, s87, 1')
            A(f's_add_u32 s91, s91, {4 + min(q, 1)}')
            A('s_cmp_lt_u32 s87, 4')
            A('s_cselect_b32 s90, s90, s91')
        else:
            A(f's_mul_i32 s90, s87, 5')
            A(f's_add_u32 s90, s90, {q}')
        A('s_cmp_lt_u32 s90, 7')
        A(f's_cselect_b32 s{srd}, s12, s14')
        A(f's_cselect_b32 s{srd + 1}, s13, s15')
        A('s_cselect_b32 s91, 0, 7')
        sel('s92', GU_BASE, GU_BASE + 7168)
        A('s_cmp_lt_u32 s90, 14')
        A(f's_cselect_b32 s{srd}, s{srd}, s6')
        A(f's_cselect_b32 s{srd + 1}, s{srd + 1}, s7')
        sel(f's{srd + 2}', 1024 * 7168, 1024 * 6144)
        A(f's_mov_b32 s{srd + 3}, 0x00020000')
        A('s_cselect_b32 s91, s91, 14')
        A(f's_cselect_b32 s92, s92, {QKV_BASE}')
        sel(f's{57 + q}', 32 * 7168, 32 * 6144)
        sel('s93', 14336, 6144)
        sel('s94', 4682, 5462)
        A('s_cselect_b32 s95, 14, 12')
        sel('s96', 7168, 6144)
        sel('s97', 64, 2048)
        A('s_cselect_b32 s98, 0, 2')
        sel('s99', 224, 64)
        A('s_mul_i32 s99, s99, s85')
        A('s_sub_u32 s90, s90, s91')
        A('s_lshl_b32 s91, s90, 10')
        A('s_add_u32 s92, s92, s91')
        for st in range(4):
            if st == 0:
                A(f's_mov_b32 s{64 + 4 * q}, s92')
            else:
                A(f's_add_u32 s{64 + 4 * q + st}, s{64 + 4 * q + st - 1}, s93')
        A(f's_mov_b32 s{52 + q}, 0')
        A('s_lshl_b32 s90, s90, 6')
        A('v_add_u32 v5, s90, v0')
        A('v_mul_lo_u32 v6, v5, s94')
        A('v_lshrrev_b32 v6, 16, v6')
        A('v_mul_lo_u32 v7, v6, s95')
        A('v_sub_u32 v7, v5, v7')
        A('v_lshrrev_b32 v8, 1, v6')
        A('v_and_b32 v8, s98, v8')
        A('v_xor_b32 v7, v7, v8')
        A('v_and_b32 v8, 0x13, v6')
        A('v_and_b32 v9, 4, v6')
        A('v_lshl_or_b32 v8, v9, 1, v8')
        A('v_and_b32 v9, 8, v6')
        A('v_lshrrev_b32 v9, 1, v9')
        A('v_or_b32 v8, v8, v9')
        A('v_mul_lo_u32 v8, v8, s96')
        A('v_lshrrev_b32 v9, 2, v7')
        A('v_mul_lo_u32 v9, v9, s97')
        A('v_and_b32 v7, 3, v7')
        A('v_lshlrev_b32 v7, 4, v7')
        A('v_add3_u32 v8, v8, v9, v7')
        A(f'v_add_u32 v{vDW[q]}, s99, v8')
    A('v_lshrrev_b32 v5, 2, v2')
    A('v_and_b32 v5, 2, v5')
    A('v_xor_b32 v5, v5, v3')
    A('v_lshlrev_b32 v5, 4, v5')
    A('v_lshl_add_u32 v5, v2, 6, v5')
    A(f's_mul_i32 s90, s88, {MT * 1024}')
    A(f'v_add_u32 v{vXR}, s90, v5')
    A('v_lshrrev_b32 v5, 5, v0')
    A('v_and_b32 v6, 1, v3')
    A('v_lshrrev_b32 v7, 2, v0')
    A('v_and_b32 v7, 3, v7')
    A('v_lshl_add_u32 v7, v6, 2, v7')
    A('v_lshl_add_u32 v7, v5, 4, v7')
    A('v_and_b32 v8, 3, v0')
    A('v_lshlrev_b32 v8, 3, v8')
    A('v_mul_u32_u24 v9, 224, v7')
    A(f'v_add3_u32 v{vGU}, v9, v8, 0')
    A(f'v_add_u32 v{vGU}, {GU_BASE}, v{vGU}')
    A('v_mul_u32_u24 v9, 192, v7')
    A('v_add_u32 v9, v9, v8')
    A(f'v_add_u32 v9, {QKV_BASE}, v9')
    A('v_lshlrev_b32 v6, 5, v6')
    A(f'v_add_u32 v{vQE}, v9, v6')
    A(f'v_sub_u32 v{vQO}, v9, v6')

    def dma_ops(wn, stage):
        ops = []
        for q in range(XL):
            ops.append([f's_add_u32 m0, s62, {X_BASE + stage * 16384 + q * 1024}',
                        f'buffer_load_dwordx4 v{vDX}, s[16:19], s{48 + q} offen lds',
                        f's_add_u32 s{48 + q}, s{48 + q}, 64'])
        nws = (3 if wn == 0 else 2) if MT == 4 else 5
        for q in range(nws):
            srd = 20 + 4 * q
            ops.append([f's_mov_b32 m0, s{64 + 4 * q + stage}',
                        f'buffer_load_dwordx4 v{vDW[q]}, s[{srd}:{srd + 3}], s{52 + q} offen lds',
                        f's_add_u32 s{52 + q}, s{52 + q}, s{57 + q}'])
        return ops

    def ntiles(wn):
        if wn == 0:
            return [('q', 0), ('q', 1), ('q', 2), ('q', 3), ('v', 4), ('v', 5), ('G', 0), ('G', 1), ('U', 0), ('U', 1)]
        return [('G', 2), ('G', 3), ('G', 4), ('G', 5), ('G', 6), ('U', 2), ('U', 3), ('U', 4), ('U', 5), ('U', 6)]

    def b_reads(wn, jt, stage, par):
        kind, T = ntiles(wn)[jt]
        reg = Breg(jt, par)
        out = []
        for a in range(2):
            if kind in 'qv':
                base = vQE if T % 2 == 0 else vQO
                off = stage * 6144 + a * 1536 + T * 32
            else:
                base = vGU
                off = stage * 14336 + (7168 if kind == 'U' else 0) + a * 1792 + T * 32
            out.append(f'ds_read_b64_tr_b16 a[{reg + 2 * a}:{reg + 2 * a + 1}], v{base} offset:{off}')
        return out

    def a_reads(stage, par):
        return [f'ds_read_b128 a[{a_A[par] + 4 * t}:{a_A[par] + 4 * t + 3}], v{vXR} offset:{X_BASE + stage * 16384 + t * 1024}'
                for t in range(MT)]

    def step(wn, par, rstage, dstage, vmwait, barrier=True):
        nm = 10 * MT
        fill = [[] for _ in range(nm)]
        if rstage is not None:
            early = a_reads(rstage, par ^ 1)
            for jt in range(7, 10):
                early += b_reads(wn, jt, rstage, par ^ 1)
            for q, ins in enumerate(early):
                fill[q].append(ins)
            for jt in range(7):
                r2 = b_reads(wn, jt, rstage, par ^ 1)
                fill[MT * jt + MT - 1].append(r2[0])
                fill[MT * jt + MT].append(r2[1])
        if dstage is not None:
            ops = dma_ops(wn, dstage)
            start = MT + 6
            stride = (nm - start - 2) // len(ops)
            for q, o in enumerate(ops):
                fill[start + q * stride] += o
        tl = ntiles(wn)
        idx = 0
        for jt in range(10):
            b = Breg(jt, par)
            for t in range(MT):
                a = a_A[par] + 4 * t
                c = R(acc(jt, t))
                if tl[jt][0] == 'v':
                    A(f'v_mfma_f32_16x16x32_bf16 {c}, a[{a}:{a + 3}], a[{b}:{b + 3}], {c}')
                else:
                    A(f'v_mfma_f32_16x16x32_bf16 {c}, a[{b}:{b + 3}], a[{a}:{a + 3}], {c}')
                for ins in fill[idx]:
                    A(ins)
                idx += 1
        if barrier:
            if vmwait is not None:
                A(f's_waitcnt vmcnt({vmwait}) lgkmcnt(0)')
            else:
                A('s_waitcnt lgkmcnt(0)')
            A('s_barrier')

    A('s_cmp_eq_u32 s89, 1')
    A(f's_cbranch_scc1 {name}_wn1')
    for wn in range(2):
        if wn == 1:
            A.label(f'{name}_wn1')
        nd = XL + ((3 if wn == 0 else 2) if MT == 4 else 5)
        for st in range(4):
            for o in dma_ops(wn, st):
                for ins in o:
                    A(ins)
        if wn == 0:
            A(f's_waitcnt vmcnt({4 * nd})')
            for i in range(8):
                A(f'v_lshl_or_b32 v{100 + i}, v{109 + 2 * i}, 16, v{108 + 2 * i}')
            A('v_lshlrev_b32 v5, 4, v0')
            A('s_lshl_b32 s90, s88, 11')
            A('v_add_u32 v5, s90, v5')
            A(f'v_add_u32 v5, {SPARE}, v5')
            A('ds_write_b128 v5, v[100:103]')
            A('ds_write_b128 v5, v[104:107] offset:1024')
            A('s_waitcnt lgkmcnt(0)')
        else:
            A(f's_waitcnt vmcnt({4 * nd})')
        for t in range(MT):
            for nt in range(10):
                k, i = acc(nt, t)
                for r in range(4):
                    if k == 'v':
                        A(f'v_mov_b32 v{i + r}, 0')
                    else:
                        A(f'v_accvgpr_write_b32 a{i + r}, 0')
        A(f's_waitcnt vmcnt({3 * nd})')
        A('s_barrier')
        for ins in a_reads(0, 0):
            A(ins)
        for jt in range(10):
            for ins in b_reads(wn, jt, 0, 0):
                A(ins)
        A(f's_waitcnt vmcnt({2 * nd}) lgkmcnt(0)')
        A('s_barrier')
        A('s_mov_b32 s84, 7')
        A.flush_hazards()
        A.label(f'{name}_loop{wn}')
        for u in range(4):
            step(wn, u & 1, (u + 1) % 4, u, 2 * nd)
        A('s_sub_u32 s84, s84, 1')
        A('s_cmp_lg_u32 s84, 0')
        A(f's_cbranch_scc1 {name}_loop{wn}')
        step(wn, 0, 1, None, nd)
        step(wn, 1, 2, None, 0)
        step(wn, 0, 3, None, None)
        step(wn, 1, None, None, None, barrier=False)
        epilogue(A, name, wn, MT, acc, R, misc, vT, opts)
        if wn == 0:
            A(f's_branch {name}_end')
    A.label(f'{name}_end')
    A('s_endpgm')
    return A.text(), nvgpr, accum_off


def epilogue(A, name, wn, MT, acc, R, misc, vT, opts):
    NW = 32 // MT
    WM = NW // 2
    vL16 = misc
    vC1 = misc + 1
    vTmp = [misc + 2 + i for i in range(8)]
    A('v_mbcnt_lo_u32_b32 v%d, -1, 0' % vL16)
    A('v_mbcnt_hi_u32_b32 v%d, -1, v%d' % (vL16, vL16))
    A(f'v_lshlrev_b32 v{vL16}, 4, v{vL16}')
    A(f'v_mov_b32 v{vC1}, {f2u(C1)}')
    A('s_lshl_b32 s90, s86, 4')
    A(f's_mul_i32 s91, s88, {MT}')
    A('s_add_u32 s90, s90, s91')
    A('s_mul_i32 s91, s90, 147456')
    A('s_lshr_b32 s92, s85, 1')
    A('s_mul_i32 s92, s92, 7')
    A('s_and_b32 s93, s85, 1')
    A('s_mul_i32 s94, s93, 3')
    A('s_add_u32 s94, s94, s92')
    A('s_lshl_b32 s94, s94, 10')
    A('s_add_u32 s94, s94, s91')
    A('s_add_u32 s95, s92, 6')
    A('s_lshl_b32 s95, s95, 10')
    A('s_add_u32 s95, s95, s91')
    A('s_lshl_b32 s93, s93, 3')
    A('s_add_u32 s95, s95, s93')

    def getv(kr, tmpbase):
        k, i = kr
        if k == 'v':
            return [i + r for r in range(4)]
        for r in range(4):
            A(f'v_accvgpr_read_b32 v{tmpbase + r}, a{i + r}')
        return [tmpbase + r for r in range(4)]

    def gelu_tile(g, u, out2, tmp):
        for r in range(4):
            A(f'v_mul_f32 v{tmp[r]}, v{g[r]}, v{g[r]}')
        for r in range(4):
            A(f'v_fmamk_f32 v{tmp[r]}, v{tmp[r]}, {f2u(C2)}, v{vC1}')
        for r in range(4):
            A(f'v_mul_f32 v{tmp[r]}, v{tmp[r]}, v{g[r]}')
        for r in range(4):
            A(f'v_exp_f32 v{tmp[r]}, v{tmp[r]}')
        for r in range(4):
            A(f'v_mul_f32 v{g[r]}, v{g[r]}, v{u[r]}')
        for r in range(4):
            A(f'v_add_f32 v{tmp[r]}, 1.0, v{tmp[r]}')
        for r in range(4):
            A(f'v_rcp_f32 v{tmp[r]}, v{tmp[r]}')
        for r in range(4):
            A(f'v_mul_f32 v{g[r]}, v{g[r]}, v{tmp[r]}')
        A(f'v_cvt_pk_bf16_f32 v{out2[0]}, v{g[0]}, v{g[1]}')
        A(f'v_cvt_pk_bf16_f32 v{out2[1]}, v{g[2]}, v{g[3]}')

    def gelu_pair(t, ntg, ntu, pairidx, single, gtmp):
        outs = []
        g0 = getv(acc(ntg[0], t), gtmp)
        u0 = getv(acc(ntu[0], t), gtmp + 4)
        gelu_tile(g0, u0, [u0[0], u0[1]], vTmp[0:4])
        if not single:
            g1 = getv(acc(ntg[1], t), gtmp + 8)
            u1 = getv(acc(ntu[1], t), gtmp + 12)
            gelu_tile(g1, u1, [u0[2], u0[3]], vTmp[0:4])
            A(f's_add_u32 s96, s94, {t * 147456 + pairidx * 1024}')
            A(f'buffer_store_dwordx4 v[{u0[0]}:{u0[3]}], v{vL16}, s[40:43], s96 offen')
        else:
            A(f's_add_u32 s96, s95, {t * 147456}')
            A(f'buffer_store_dwordx2 v[{u0[0]}:{u0[1]}], v{vL16}, s[40:43], s96 offen')

    if wn == 1:
        gtmp = 0
        for t in range(MT):
            gelu_pair(t, [0, 1], [5, 6], 1, False, gtmp)
            gelu_pair(t, [2, 3], [7, 8], 2, False, gtmp)
            gelu_pair(t, [4], [9], None, True, gtmp)
    else:
        assert MT == 4 or True
        A('s_lshl_b32 s96, s85, 7')
        A('s_add_u32 s96, s96, s90')
        A('s_lshl_b32 s96, s96, 10')
        A(f's_add_u32 s96, s96, {WS_Q}')
        A('s_lshl_b32 s97, s88, 11')
        A(f's_add_u32 s97, s97, {SPARE}')
        A(f'v_add_u32 v{vTmp[0]}, s97, v{vL16}')
        A(f'ds_read_b128 a[{200 if MT == 8 else 76}:{203 if MT == 8 else 79}], v{vTmp[0]}')
        A(f'ds_read_b128 a[{204 if MT == 8 else 80}:{207 if MT == 8 else 83}], v{vTmp[0]} offset:1024')
        aW = 200 if MT == 8 else 76
        aKV = 80 if MT == 8 else 0
        def tile_v(nt, t):
            k, i = acc(nt, t)
            assert k == 'v' or MT == 8
            return i
        if MT == 8:
            raise NotImplementedError
        for t in range(MT):
            q0, q1 = tile_v(0, t), tile_v(1, t)
            A(f'v_cvt_pk_bf16_f32 v{q0}, v{q0}, v{q0 + 1}')
            A(f'v_cvt_pk_bf16_f32 v{q0 + 1}, v{q0 + 2}, v{q0 + 3}')
            A(f'v_cvt_pk_bf16_f32 v{q0 + 2}, v{q1}, v{q1 + 1}')
            A(f'v_cvt_pk_bf16_f32 v{q0 + 3}, v{q1 + 2}, v{q1 + 3}')
            A(f'buffer_store_dwordx4 v[{q0}:{q0 + 3}], v{vL16}, s[40:43], s96 offen offset:{t * 1024}')
        for t in range(MT):
            k0, k1 = tile_v(2, t), tile_v(3, t)
            A(f'v_cvt_pk_bf16_f32 v{k0}, v{k0}, v{k0 + 1}')
            A(f'v_cvt_pk_bf16_f32 v{k0 + 1}, v{k0 + 2}, v{k0 + 3}')
            A(f'v_cvt_pk_bf16_f32 v{k0 + 2}, v{k1}, v{k1 + 1}')
            A(f'v_cvt_pk_bf16_f32 v{k0 + 3}, v{k1 + 2}, v{k1 + 3}')
        for tp in range(0, MT, 2):
            for dt in range(2):
                a0, a1 = tile_v(4 + dt, tp), tile_v(4 + dt, tp + 1)
                A(f'v_cvt_pk_bf16_f32 v{a0}, v{a0}, v{a0 + 1}')
                A(f'v_cvt_pk_bf16_f32 v{a0 + 1}, v{a0 + 2}, v{a0 + 3}')
                A(f'v_cvt_pk_bf16_f32 v{a0 + 2}, v{a1}, v{a1 + 1}')
                A(f'v_cvt_pk_bf16_f32 v{a0 + 3}, v{a1 + 2}, v{a1 + 3}')
        A('s_waitcnt lgkmcnt(0)')
        for t in range(MT):
            k0 = tile_v(2, t)
            p0, p1 = tile_v(1, t), tile_v(3, t)
            A(f'v_mfma_f32_16x16x32_bf16 v[{p0}:{p0 + 3}], v[{k0}:{k0 + 3}], a[{aW}:{aW + 3}], 0')
            A(f'v_mfma_f32_16x16x32_bf16 v[{p1}:{p1 + 3}], v[{k0}:{k0 + 3}], a[{aW + 4}:{aW + 7}], 0')
        for t in range(MT):
            gelu_pair(t, [6, 7], [8, 9], 0, False, 0)
        ones = tile_v(4, 1)
        for r in range(4):
            A(f'v_mov_b32 v{ones + r}, 0x3f803f80')
        pool = []
        for t in range(MT):
            pool += [tile_v(6, t) + r for r in range(4)] + [tile_v(7, t) + r for r in range(4)] + [tile_v(9, t) + r for r in range(4)]
        mx = pool[0:4]; mn = pool[4:8]; sp = pool[8:12]; sn = pool[12:16]
        ep = pool[16:24]; en = pool[24:32]
        phi = [tile_v(0, 0), tile_v(0, 1), tile_v(0, 2), tile_v(0, 3)]
        sL = 's97'
        A(f's_mov_b32 {sL}, {f2u(LOG2E)}')
        DPP = ' row_mask:0xf bank_mask:0xf'
        for t in range(MT):
            p0, p1 = tile_v(1, t), tile_v(3, t)
            P = [p0 + r for r in range(4)] + [p1 + r for r in range(4)]
            if opts.get('round_p', True):
                for i in range(0, 8, 2):
                    A(f'v_cvt_pk_bf16_f32 v{ep[i]}, v{P[i]}, v{P[i + 1]}')
                for i in range(0, 8, 2):
                    A(f'v_lshlrev_b32 v{P[i]}, 16, v{ep[i]}')
                    A(f'v_and_b32 v{P[i + 1]}, 0xffff0000, v{ep[i]}')
            for r in range(4):
                A(f'v_max_f32 v{mx[r]}, v{P[r]}, v{P[4 + r]}')
                A(f'v_min_f32 v{mn[r]}, v{P[r]}, v{P[4 + r]}')
            for sh in (8, 4, 2, 1):
                for r in range(4):
                    A(f'v_max_f32_dpp v{mx[r]}, v{mx[r]}, v{mx[r]} row_ror:{sh}' + DPP)
                    A(f'v_min_f32_dpp v{mn[r]}, v{mn[r]}, v{mn[r]} row_ror:{sh}' + DPP)
            for i in range(8):
                A(f'v_sub_f32 v{ep[i]}, v{P[i]}, v{mx[i & 3]}')
                A(f'v_sub_f32 v{en[i]}, v{mn[i & 3]}, v{P[i]}')
            for i in range(8):
                A(f'v_mul_f32 v{ep[i]}, {sL}, v{ep[i]}')
                A(f'v_mul_f32 v{en[i]}, {sL}, v{en[i]}')
            for i in range(8):
                A(f'v_exp_f32 v{ep[i]}, v{ep[i]}')
                A(f'v_exp_f32 v{en[i]}, v{en[i]}')
            for r in range(4):
                A(f'v_add_f32 v{sp[r]}, v{ep[r]}, v{ep[4 + r]}')
                A(f'v_add_f32 v{sn[r]}, v{en[r]}, v{en[4 + r]}')
            for sh in (8, 4, 2, 1):
                for r in range(4):
                    A(f'v_add_f32_dpp v{sp[r]}, v{sp[r]}, v{sp[r]} row_ror:{sh}' + DPP)
                    A(f'v_add_f32_dpp v{sn[r]}, v{sn[r]}, v{sn[r]} row_ror:{sh}' + DPP)
            for r in range(4):
                A(f'v_rcp_f32 v{sp[r]}, v{sp[r]}')
                A(f'v_rcp_f32 v{sn[r]}, v{sn[r]}')
            for i in range(8):
                A(f'v_mul_f32 v{ep[i]}, v{ep[i]}, v{sp[i & 3]}')
                A(f'v_mul_f32 v{en[i]}, v{en[i]}, v{sn[i & 3]}')
            h = (t & 1) * 2
            for F in range(4):
                src = (ep if F < 2 else en)[(F & 1) * 4:(F & 1) * 4 + 4]
                A(f'v_cvt_pk_bf16_f32 v{phi[F] + h}, v{src[0]}, v{src[1]}')
                A(f'v_cvt_pk_bf16_f32 v{phi[F] + h + 1}, v{src[2]}, v{src[3]}')
            if t & 1:
                tp = t - 1
                for F in range(4):
                    for dt in range(3):
                        b = tile_v(4 + dt, tp) if dt < 2 else ones
                        c = aKV + (F * 3 + dt) * 4
                        cin = '0' if tp == 0 else f'a[{c}:{c + 3}]'
                        A(f'v_mfma_f32_16x16x32_bf16 a[{c}:{c + 3}], v[{phi[F]}:{phi[F] + 3}], v[{b}:{b + 3}], {cin}')
        A(f's_mul_i32 s97, s88, 12288')
        A(f'v_add_u32 v{vTmp[0]}, s97, v{vL16}')
        for i in range(12):
            A(f'ds_write_b128 v{vTmp[0]}, a[{aKV + 4 * i}:{aKV + 4 * i + 3}] offset:{i * 1024}')
        A('s_waitcnt lgkmcnt(0)')
    A('s_barrier')
    A('s_lshl_b32 s96, s85, 3')
    A('s_add_u32 s96, s96, s86')
    A('s_mul_i32 s96, s96, 12288')
    A(f's_add_u32 s96, s96, {WS_KV}')
    A('s_lshl_b32 s97, s87, 10')
    A('s_add_u32 s96, s96, s97')
    A(f'v_add_u32 v{vTmp[0]}, s97, v{vL16}')
    ntile = 2 if wn == 0 else 1
    if NW == 4:
        ntile = 3
    for e in range(ntile):
        base = 0 + 16 * e
        for p in range(WM):
            A(f'ds_read_b128 v[{base + 4 * p}:{base + 4 * p + 3}], v{vTmp[0]} offset:{p * 12288 + e * NW * 1024}')
    A('s_waitcnt lgkmcnt(0)')
    for e in range(ntile):
        base = 16 * e
        for p in range(1, WM):
            for r in range(4):
                A(f'v_add_f32 v{base + r}, v{base + r}, v{base + 4 * p + r}')
        A(f's_add_u32 s97, s96, {e * NW * 1024}')
        A(f'buffer_store_dwordx4 v[{base}:{base + 3}], v{vL16}, s[40:43], s97 offen')
```

```python
from asmlib import Asm
from gen_k1 import WS_A, WS_Q, WS_KV, WS_G, WS_BYTES, f2u, LOG2E

K2_LDS = 8192
K3_LDS = 131072
DPP = ' row_mask:0xf bank_mask:0xf'


def gen_k2(name):
    A = Asm()
    A.raw(f'.globl {name}\n.p2align 8\n.type {name},@function\n{name}:')
    A('s_cmp_ge_u32 s2, 256')
    A(f's_cbranch_scc1 {name}_end')
    A('s_load_dwordx2 s[4:5], s[0:1], 0')
    A('s_load_dwordx2 s[8:9], s[0:1], 16')
    A('s_load_dwordx2 s[6:7], s[0:1], 64')
    A('s_load_dwordx2 s[10:11], s[0:1], 88')
    A('v_lshrrev_b32 v1, 6, v0')
    A('v_and_b32 v0, 63, v0')
    A('v_readfirstlane_b32 s87, v1')
    A('s_and_b32 s90, s2, 7')
    A('s_lshr_b32 s91, s2, 3')
    A('s_and_b32 s92, s91, 3')
    A('s_lshl_b32 s85, s90, 2')
    A('s_add_u32 s85, s85, s92')
    A('s_lshr_b32 s86, s91, 2')
    A('s_waitcnt lgkmcnt(0)')
    A('s_mov_b32 s16, s4\ns_mov_b32 s17, s5\ns_mov_b32 s18, 0x400000\ns_mov_b32 s19, 0x00020000')
    A('s_mov_b32 s20, s6\ns_mov_b32 s21, s7\ns_mov_b32 s22, 2048\ns_mov_b32 s23, 0x00020000')
    A(f's_mov_b32 s40, s10\ns_mov_b32 s41, s11\ns_mov_b32 s42, {WS_BYTES}\ns_mov_b32 s43, 0x00020000')
    A('s_mov_b32 s44, s8\ns_mov_b32 s45, s9\ns_mov_b32 s46, 65536\ns_mov_b32 s47, 0x00020000')
    A('v_lshlrev_b32 v1, 4, v0')
    A('s_mul_i32 s90, s85, 98304')
    A('s_mul_i32 s91, s87, 3072')
    A('s_add_u32 s90, s90, s91')
    A(f's_add_u32 s90, s90, {WS_KV}')
    for p in range(8):
        for e in range(3):
            A(f'buffer_load_dwordx4 v[{100 + (p * 3 + e) * 4}:{103 + (p * 3 + e) * 4}], v1, s[40:43], s90 offen offset:{e * 1024}')
        if p < 7:
            A('s_add_u32 s90, s90, 12288')
    A('v_and_b32 v2, 15, v0')
    A('v_lshrrev_b32 v3, 4, v0')
    A('v_lshlrev_b32 v4, 8, v3')
    A('v_lshl_add_u32 v4, v2, 1, v4')
    A('s_lshl_b32 s91, s85, 11')
    for ft in range(2):
        for jj in range(8):
            d = 16 * (jj >> 2) + (jj & 3)
            A(f'buffer_load_ushort v{20 + ft * 8 + jj}, v4, s[44:47], s91 offen offset:{d * 64 + ft * 32}')
    A('s_lshl_b32 s92, s86, 4')
    A('s_lshl_b32 s93, s87, 2')
    A('s_add_u32 s92, s92, s93')
    A('s_lshl_b32 s93, s85, 7')
    A('s_add_u32 s93, s93, s92')
    A('s_lshl_b32 s93, s93, 10')
    A(f's_add_u32 s93, s93, {WS_Q}')
    for t in range(4):
        A(f'buffer_load_dwordx4 v[{40 + 4 * t}:{43 + 4 * t}], v1, s[40:43], s93 offen offset:{t * 1024}')
    A('s_lshl_b32 s94, s86, 8')
    A('s_lshl_b32 s95, s85, 3')
    A('s_add_u32 s94, s94, s95')
    A('s_lshl_b32 s95, s87, 1')
    A('s_add_u32 s94, s94, s95')
    A('s_lshl_b32 s95, s94, 11')
    for e in range(2):
        for hf in range(2):
            A(f'buffer_load_dwordx4 v[{60 + (e * 2 + hf) * 4}:{63 + (e * 2 + hf) * 4}], v1, s[16:19], s95 offen offset:{e * 2048 + hf * 1024}')
    for hf in range(2):
        A(f'buffer_load_dwordx4 v[{76 + hf * 4}:{79 + hf * 4}], v1, s[20:23], 0 offen offset:{hf * 1024}')
    A('s_waitcnt vmcnt(26)')
    for p in range(1, 8):
        for i in range(12):
            A(f'v_add_f32 v{100 + i}, v{100 + i}, v{100 + p * 12 + i}')
    for e in range(3):
        A(f'v_cvt_pk_bf16_f32 v{100 + 4 * e}, v{100 + 4 * e}, v{101 + 4 * e}')
        A(f'v_cvt_pk_bf16_f32 v{101 + 4 * e}, v{102 + 4 * e}, v{103 + 4 * e}')
    A('s_lshr_b32 s90, s87, 1')
    A('s_lshl_b32 s90, s90, 10')
    A('s_and_b32 s91, s87, 1')
    A('s_lshl_b32 s91, s91, 3')
    A('s_add_u32 s90, s90, s91')
    A('v_add_u32 v5, s90, v1')
    for e in range(3):
        A(f'ds_write_b64 v5, v[{100 + 4 * e}:{101 + 4 * e}] offset:{e * 2048}')
    A('s_waitcnt vmcnt(10) lgkmcnt(0)')
    A('s_barrier')
    for i in range(6):
        A(f'ds_read_b128 v[{120 + 4 * i}:{123 + 4 * i}], v1 offset:{i * 1024}')
    for i in range(8):
        A(f'v_lshl_or_b32 v{10 + i}, v{21 + 2 * i}, 16, v{20 + 2 * i}')
    A('s_waitcnt vmcnt(0)')
    for e in range(2):
        acc = 84 + e
        A(f'v_mov_b32 v{acc}, 0')
        for i in range(8):
            xr, gr = 60 + e * 8 + i, 76 + i
            A(f'v_lshlrev_b32 v86, 16, v{xr}')
            A(f'v_lshlrev_b32 v87, 16, v{gr}')
            A(f'v_fmac_f32 v{acc}, v86, v87')
            A(f'v_and_b32 v86, 0xffff0000, v{xr}')
            A(f'v_and_b32 v87, 0xffff0000, v{gr}')
            A(f'v_fmac_f32 v{acc}, v86, v87')
    for sh in (8, 4, 2, 1):
        for e in range(2):
            A(f'v_add_f32_dpp v{84 + e}, v{84 + e}, v{84 + e} row_ror:{sh}' + DPP)
    for e in range(2):
        for (sw) in ('v_permlane16_swap_b32', 'v_permlane32_swap_b32'):
            A(f'v_mov_b32 v86, v{84 + e}')
            A(f'{sw} v{84 + e}, v86')
            A(f'v_add_f32 v{84 + e}, v{84 + e}, v86')
    A('v_cvt_pk_bf16_f32 v86, v84, v85')
    A('v_lshlrev_b32 v84, 16, v86')
    A('v_and_b32 v85, 0xffff0000, v86')
    for e in range(2):
        A(f'v_mul_f32 v{84 + e}, {f2u(-LOG2E)}, v{84 + e}')
        A(f'v_exp_f32 v{84 + e}, v{84 + e}')
        A(f'v_add_f32 v{84 + e}, 1.0, v{84 + e}')
        A(f'v_rcp_f32 v{84 + e}, v{84 + e}')
    A('v_cvt_pk_bf16_f32 v86, v84, v85')
    A('v_lshlrev_b32 v84, 16, v86')
    A('v_and_b32 v85, 0xffff0000, v86')
    A('s_lshl_b32 s95, s94, 2')
    A(f's_add_u32 s95, s95, {WS_G}')
    A('v_mov_b32 v86, 0')
    A('s_mov_b64 exec, 1')
    A('buffer_store_dwordx2 v[84:85], v86, s[40:43], s95 offen')
    A('s_mov_b64 exec, -1')
    A('s_waitcnt lgkmcnt(0)')
    A(f's_mov_b32 s97, {f2u(LOG2E)}')
    A('s_mul_i32 s96, s92, 147456')
    A('s_add_u32 s95, s85, 112')
    A('s_lshl_b32 s95, s95, 10')
    A('s_add_u32 s96, s96, s95')
    for t in range(4):
        q = 40 + 4 * t
        B = 150 + t * 24
        P = [B + i for i in range(8)]
        ep = [B + 8 + i for i in range(8)]
        en = [B + 16 + i for i in range(8)]
        A(f'v_mfma_f32_16x16x32_bf16 v[{P[0]}:{P[3]}], v[10:13], v[{q}:{q + 3}], 0')
        A(f'v_mfma_f32_16x16x32_bf16 v[{P[4]}:{P[7]}], v[14:17], v[{q}:{q + 3}], 0')
    for t in range(4):
        B = 150 + t * 24
        P = [B + i for i in range(8)]
        ep = [B + 8 + i for i in range(8)]
        en = [B + 16 + i for i in range(8)]
        mx, mn, tm, tn = 60, 61, 62, 63
        for i in range(0, 8, 2):
            A(f'v_cvt_pk_bf16_f32 v{ep[i]}, v{P[i]}, v{P[i + 1]}')
        for i in range(0, 8, 2):
            A(f'v_lshlrev_b32 v{P[i]}, 16, v{ep[i]}')
            A(f'v_and_b32 v{P[i + 1]}, 0xffff0000, v{ep[i]}')
        A(f'v_max3_f32 v{mx}, v{P[0]}, v{P[1]}, v{P[2]}')
        A(f'v_min3_f32 v{mn}, v{P[0]}, v{P[1]}, v{P[2]}')
        A(f'v_max3_f32 v{mx}, v{mx}, v{P[3]}, v{P[4]}')
        A(f'v_min3_f32 v{mn}, v{mn}, v{P[3]}, v{P[4]}')
        A(f'v_max3_f32 v{mx}, v{mx}, v{P[5]}, v{P[6]}')
        A(f'v_min3_f32 v{mn}, v{mn}, v{P[5]}, v{P[6]}')
        A(f'v_max_f32 v{mx}, v{mx}, v{P[7]}')
        A(f'v_min_f32 v{mn}, v{mn}, v{P[7]}')
        for sw in ('v_permlane16_swap_b32', 'v_permlane32_swap_b32'):
            A(f'v_mov_b32 v{tm}, v{mx}')
            A(f'v_mov_b32 v{tn}, v{mn}')
            A(f'{sw} v{mx}, v{tm}')
            A(f'{sw} v{mn}, v{tn}')
            A(f'v_max_f32 v{mx}, v{mx}, v{tm}')
            A(f'v_min_f32 v{mn}, v{mn}, v{tn}')
        for i in range(8):
            A(f'v_sub_f32 v{ep[i]}, v{P[i]}, v{mx}')
            A(f'v_sub_f32 v{en[i]}, v{mn}, v{P[i]}')
        for i in range(8):
            A(f'v_mul_f32 v{ep[i]}, s97, v{ep[i]}')
            A(f'v_mul_f32 v{en[i]}, s97, v{en[i]}')
        for i in range(8):
            A(f'v_exp_f32 v{ep[i]}, v{ep[i]}')
            A(f'v_exp_f32 v{en[i]}, v{en[i]}')
        A(f'v_add_f32 v{mx}, v{ep[0]}, v{ep[1]}')
        A(f'v_add_f32 v{mn}, v{en[0]}, v{en[1]}')
        for i in range(2, 8):
            A(f'v_add_f32 v{mx}, v{mx}, v{ep[i]}')
            A(f'v_add_f32 v{mn}, v{mn}, v{en[i]}')
        for sw in ('v_permlane16_swap_b32', 'v_permlane32_swap_b32'):
            A(f'v_mov_b32 v{tm}, v{mx}')
            A(f'v_mov_b32 v{tn}, v{mn}')
            A(f'{sw} v{mx}, v{tm}')
            A(f'{sw} v{mn}, v{tn}')
            A(f'v_add_f32 v{mx}, v{mx}, v{tm}')
            A(f'v_add_f32 v{mn}, v{mn}, v{tn}')
        A(f'v_rcp_f32 v{mx}, v{mx}')
        A(f'v_rcp_f32 v{mn}, v{mn}')
        for i in range(8):
            A(f'v_mul_f32 v{ep[i]}, v{ep[i]}, v{mx}')
            A(f'v_mul_f32 v{en[i]}, v{en[i]}, v{mn}')
        for i in range(4):
            A(f'v_cvt_pk_bf16_f32 v{P[i]}, v{ep[2 * i]}, v{ep[2 * i + 1]}')
            A(f'v_cvt_pk_bf16_f32 v{P[4 + i]}, v{en[2 * i]}, v{en[2 * i + 1]}')
        dsts = [ep[0], ep[4], en[0]]
        for b in range(2):
            for dt in range(3):
                kf = 120 + 4 * (dt * 2 + b)
                d = dsts[dt]
                cin = '0' if b == 0 else f'v[{d}:{d + 3}]'
                A(f'v_mfma_f32_16x16x32_bf16 v[{d}:{d + 3}], v[{kf}:{kf + 3}], v[{P[4 * b]}:{P[4 * b + 3]}], {cin}')
    for t in range(4):
        B = 150 + t * 24
        P = [B + i for i in range(8)]
        ep = [B + 8 + i for i in range(8)]
        en = [B + 16 + i for i in range(8)]
        A(f'v_cvt_pk_bf16_f32 v{en[4]}, v{en[0]}, v{en[0]}')
        A(f'v_lshlrev_b32 v{en[4]}, 16, v{en[4]}')
        A(f'v_add_f32 v{en[4]}, {f2u(1e-6)}, v{en[4]}')
        A(f'v_cvt_pk_bf16_f32 v{en[4]}, v{en[4]}, v{en[4]}')
        A(f'v_lshlrev_b32 v{en[4]}, 16, v{en[4]}')
        A(f'v_rcp_f32 v{en[4]}, v{en[4]}')
        for i in range(0, 8, 2):
            A(f'v_cvt_pk_bf16_f32 v{P[i]}, v{ep[i]}, v{ep[i + 1]}')
        for i in range(0, 8, 2):
            A(f'v_lshlrev_b32 v{ep[i]}, 16, v{P[i]}')
            A(f'v_and_b32 v{ep[i + 1]}, 0xffff0000, v{P[i]}')
        for i in range(8):
            A(f'v_mul_f32 v{ep[i]}, v{ep[i]}, v{en[4]}')
        for i in range(4):
            A(f'v_cvt_pk_bf16_f32 v{P[i]}, v{ep[2 * i]}, v{ep[2 * i + 1]}')
        A(f'buffer_store_dwordx4 v[{P[0]}:{P[3]}], v1, s[40:43], s96 offen')
        if t < 3:
            A('s_add_u32 s96, s96, 147456')
    A.label(f'{name}_end')
    A('s_endpgm')
    return A.text(), 248, 248


class VM:
    def __init__(self):
        self.n = 0
        self.pos = {}
    def issue(self, tag=None):
        self.n += 1
        if tag is not None:
            self.pos[tag] = self.n
    def cnt(self, tag):
        return self.n - self.pos[tag]


def gen_k3(name, D=14):
    A = Asm()
    A.raw(f'.globl {name}\n.p2align 8\n.type {name},@function\n{name}:')
    A('s_cmp_ge_u32 s2, 256')
    A(f's_cbranch_scc1 {name}_end')
    A('s_load_dwordx2 s[4:5], s[0:1], 24')
    A('s_load_dwordx2 s[6:7], s[0:1], 56')
    A('s_load_dwordx2 s[8:9], s[0:1], 72')
    A('s_load_dwordx2 s[10:11], s[0:1], 88')
    A('v_lshrrev_b32 v1, 6, v0')
    A('v_and_b32 v0, 63, v0')
    A('v_readfirstlane_b32 s87, v1')
    A('s_and_b32 s90, s2, 7')
    A('s_lshr_b32 s91, s2, 3')
    A('s_lshr_b32 s92, s90, 1')
    A('s_lshl_b32 s92, s92, 2')
    A('s_and_b32 s93, s91, 3')
    A('s_add_u32 s86, s92, s93')
    A('s_and_b32 s92, s90, 1')
    A('s_lshl_b32 s92, s92, 3')
    A('s_lshr_b32 s93, s91, 2')
    A('s_add_u32 s85, s92, s93')
    A('s_waitcnt lgkmcnt(0)')
    A('s_mov_b32 s16, s6\ns_mov_b32 s17, s7\ns_mov_b32 s18, %d\ns_mov_b32 s19, 0x00020000' % (3584 * 2048))
    A('s_mov_b32 s20, s4\ns_mov_b32 s21, s5\ns_mov_b32 s22, %d\ns_mov_b32 s23, 0x00020000' % (1024 * 2048))
    A('s_mov_b32 s24, s8\ns_mov_b32 s25, s9\ns_mov_b32 s26, 0x400000\ns_mov_b32 s27, 0x00020000')
    A(f's_mov_b32 s40, s10\ns_mov_b32 s41, s11\ns_mov_b32 s42, {WS_BYTES}\ns_mov_b32 s43, 0x00020000')
    accB, accA = 0, 32
    vB = 64
    vA = 96
    misc = vA + D * 8
    vL16, vDW, vG = misc, misc + 1, misc + 2
    vRB = misc + 4
    vOut = misc + 12
    nv = misc + 16
    A(f'v_lshlrev_b32 v{vL16}, 4, v0')
    A('v_lshrrev_b32 v2, 3, v0')
    A('v_and_b32 v3, 6, v2')
    A('v_and_b32 v4, 7, v0')
    A('v_xor_b32 v4, v4, v3')
    A('v_lshlrev_b32 v4, 4, v4')
    A('v_lshl_add_u32 v4, v2, 11, v4')
    A('s_lshl_b32 s90, s85, 7')
    A(f'v_add_u32 v{vDW}, s90, v4')
    A('s_lshl_b32 s48, s87, 14')
    A('s_lshl_b32 s62, s87, 10')
    A('v_lshrrev_b32 v2, 2, v0')
    A('v_lshrrev_b32 v3, 1, v2')
    A('v_and_b32 v3, 3, v3')
    A('v_and_b32 v4, 3, v0')
    A('v_lshlrev_b32 v4, 3, v4')
    A('v_lshl_add_u32 v4, v2, 7, v4')
    for T in range(4):
        A(f'v_xor_b32 v5, {T}, v3')
        A(f'v_lshl_add_u32 v{vRB + T}, v5, 5, v4')
        A(f'v_add_u32 v{vRB + 4 + T}, 0x10000, v{vRB + T}')
    A('s_lshl_b32 s92, s86, 3')
    A('s_lshl_b32 s93, s87, 1')
    A('s_add_u32 s92, s92, s93')
    A('s_mul_i32 s50, s92, 147456')
    A('s_add_u32 s51, s50, 147456')
    A('v_and_b32 v2, 15, v0')
    A('v_lshlrev_b32 v3, 2, v2')
    A('s_lshl_b32 s93, s92, 6')
    A(f's_add_u32 s93, s93, {WS_G}')
    vm = VM()
    A(f'buffer_load_dword v{vG}, v3, s[40:43], s93 offen')
    A(f'buffer_load_dword v{vG + 1}, v3, s[40:43], s93 offen offset:64')
    vm.issue(); vm.issue('g')
    A('v_lshrrev_b32 v3, 4, v0')
    A('v_lshlrev_b32 v3, 3, v3')
    A('v_lshl_add_u32 v3, v2, 11, v3')
    A('s_lshl_b32 s93, s92, 15')
    A('s_add_u32 s93, s93, s90')
    A(f'v_add_u32 v{vOut}, s93, v3')

    BG = [(0, 16), (32, 48), (64, 80), (112, 128), (144, 160), (176, 192), (96, 208)]
    AG = [(32 * p, 32 * p + 16) for p in range(8)]
    stages = [('b', BG)] * 16 + [('a', AG)] * 4
    kbs = []
    for s, (kind, G) in enumerate(stages):
        for p in range(len(G)):
            kbs.append((s, p))
    NKB = len(kbs)

    def dma_stage(s):
        kind, G = stages[s]
        n = 7 if kind == 'b' else 8
        srd = 's[16:19]' if kind == 'b' else 's[20:23]'
        ops = []
        for i in range(n):
            o = []
            if s == 16 and i == 0:
                o.append('s_lshl_b32 s48, s87, 14')
            o += [f's_add_u32 m0, s62, {(s % 4) * 32768 + i * 4096}',
                  f'buffer_load_dwordx4 v{vDW}, {srd}, s48 offen lds',
                  f's_add_u32 s48, s48, {32 * 2048}']
            ops.append(o)
        return ops

    def a_load(kb):
        r = vA + (kb % D) * 8
        return [f'buffer_load_dwordx4 v[{r}:{r + 3}], v{vL16}, s[40:43], s50 offen',
                f'buffer_load_dwordx4 v[{r + 4}:{r + 7}], v{vL16}, s[40:43], s51 offen',
                's_add_u32 s50, s50, 1024', 's_add_u32 s51, s51, 1024']

    def b_reads(kb):
        s, p = kbs[kb]
        G = stages[s][1][p]
        slot = s % 4
        par = kb & 1
        out = []
        for T in range(4):
            for a in range(2):
                r = vB + par * 16 + T * 4 + 2 * a
                base = vRB + T + (4 if slot >= 2 else 0)
                off = (slot & 1) * 32768 + G[a] * 128
                out.append(f'ds_read_b64_tr_b16 v[{r}:{r + 1}], v{base} offset:{off}')
        return out

    def emit_kb(kb, rec):
        s, p = kbs[kb]
        kind, G = stages[s]
        last = p == len(G) - 1
        w = vm.cnt(('A', kb))
        if last and s + 1 < len(stages):
            w = min(w, vm.cnt(('W', s + 1)))
            rec.append(('wait', w))
            rec.append('s_barrier')
        else:
            rec.append(('wait', w))
        fill = [[] for _ in range(8)]
        if kb + 1 < NKB:
            for i, ins in enumerate(b_reads(kb + 1)):
                fill[i].append(ins)
        post = []
        if kb + D < NKB:
            post = a_load(kb + D)
        dm = []
        if last and s + 4 < len(stages):
            dm = dma_stage(s + 4)
        accb = accB if kind == 'b' else accA
        first = (kb == 0) or (kb == 112)
        ar = vA + (kb % D) * 8
        i = 0
        for T in range(4):
            b = vB + (kb & 1) * 16 + T * 4
            for t in range(2):
                c = accb + (t * 4 + T) * 4
                cin = '0' if first else f'v[{c}:{c + 3}]'
                rec.append(f'v_mfma_f32_16x16x32_bf16 v[{c}:{c + 3}], v[{b}:{b + 3}], v[{ar + 4 * t}:{ar + 4 * t + 3}], {cin}')
                rec.extend(fill[i])
                if i < len(dm):
                    rec.extend(dm[i])
                    vm.issue(('W', s + 4))
                i += 1
        for ins in post:
            rec.append(ins)
        if post:
            vm.issue(); vm.issue(('A', kb + D))

    def flush(rec):
        for r in rec:
            if isinstance(r, tuple):
                A(f's_waitcnt vmcnt({min(r[1], 63)}) lgkmcnt(0)')
            else:
                A(r)

    for s in range(4):
        for o in dma_stage(s):
            for ins in o:
                A(ins)
            vm.issue(('W', s))
        if s == 0:
            for kb in range(D // 2):
                for ins in a_load(kb):
                    A(ins)
                vm.issue(); vm.issue(('A', kb))
        if s == 1:
            for kb in range(D // 2, D):
                for ins in a_load(kb):
                    A(ins)
                vm.issue(); vm.issue(('A', kb))
    A(f's_waitcnt vmcnt({vm.cnt(("W", 0))})')
    A('s_barrier')
    for ins in b_reads(0):
        A(ins)
    recs = []
    for it in range(3):
        rec = []
        for kb in range(28 * it, 28 * it + 28):
            emit_kb(kb, rec)
        recs.append(rec)
    flush(recs[0])
    body = []
    for r1, r2 in zip(recs[1], recs[2]):
        if isinstance(r1, tuple):
            body.append(('wait', min(r1[1], r2[1])))
        else:
            assert r1 == r2, (r1, r2)
            body.append(r1)
    A('s_mov_b32 s84, 2')
    A.flush_hazards()
    A.label(f'{name}_loop')
    flush(body)
    A('s_sub_u32 s84, s84, 1')
    A('s_cmp_lg_u32 s84, 0')
    A(f's_cbranch_scc1 {name}_loop')
    rec = []
    for kb in range(84, NKB):
        emit_kb(kb, rec)
    flush(rec)
    A('s_waitcnt vmcnt(0)')
    t0, t1, t2, t3 = vB, vB + 1, vB + 2, vB + 3
    for t in range(2):
        g = vG + t
        omg = vB + 4 + t
        A(f'v_sub_f32 v{omg}, 1.0, v{g}')
        A(f'v_cvt_pk_bf16_f32 v{omg}, v{omg}, v{omg}')
        A(f'v_lshlrev_b32 v{omg}, 16, v{omg}')
        for T in range(4):
            cb = accB + (t * 4 + T) * 4
            ca = accA + (t * 4 + T) * 4
            for (c, sc) in ((cb, omg), (ca, g)):
                A(f'v_cvt_pk_bf16_f32 v{t0}, v{c}, v{c + 1}')
                A(f'v_cvt_pk_bf16_f32 v{t1}, v{c + 2}, v{c + 3}')
                A(f'v_lshlrev_b32 v{c}, 16, v{t0}')
                A(f'v_and_b32 v{c + 1}, 0xffff0000, v{t0}')
                A(f'v_lshlrev_b32 v{c + 2}, 16, v{t1}')
                A(f'v_and_b32 v{c + 3}, 0xffff0000, v{t1}')
                for r in range(4):
                    A(f'v_mul_f32 v{c + r}, v{sc}, v{c + r}')
                A(f'v_cvt_pk_bf16_f32 v{t0}, v{c}, v{c + 1}')
                A(f'v_cvt_pk_bf16_f32 v{t1}, v{c + 2}, v{c + 3}')
                A(f'v_lshlrev_b32 v{c}, 16, v{t0}')
                A(f'v_and_b32 v{c + 1}, 0xffff0000, v{t0}')
                A(f'v_lshlrev_b32 v{c + 2}, 16, v{t1}')
                A(f'v_and_b32 v{c + 3}, 0xffff0000, v{t1}')
            for r in range(4):
                A(f'v_add_f32 v{cb + r}, v{cb + r}, v{ca + r}')
            A(f'v_cvt_pk_bf16_f32 v{cb}, v{cb}, v{cb + 1}')
            A(f'v_cvt_pk_bf16_f32 v{cb + 1}, v{cb + 2}, v{cb + 3}')
            A(f's_mov_b32 s90, {t * 32768}')
            A(f'buffer_store_dwordx2 v[{cb}:{cb + 1}], v{vOut}, s[24:27], s90 offen offset:{T * 32}')
    A.label(f'{name}_end')
    A('s_endpgm')
    nv = (nv + 7) // 8 * 8
    return A.text(), nv, nv
```

```python
import sys
from asmlib import kd
import gen_k1

HEADER = open('gated_mix__linear_kernel_hedgehog__glu_gated_geglu__prompt.s.ref').read().split('; Override launch')[0]

def build(kernels):
    out = HEADER
    for (name, text, vg, ac, grid, block, lds) in kernels:
        out += f'; @launch kernel={name} grid=({grid},1,1) block=({block},1,1) lds={lds}\n'
    out += '.amdgcn_target "amdgcn-amd-amdhsa--gfx950"\n.text\n'
    for (name, text, vg, ac, grid, block, lds) in kernels:
        out += text + '\n'
    for (name, text, vg, ac, grid, block, lds) in kernels:
        out += kd(name, vg, ac)
    return out

if __name__ == '__main__':
    which = sys.argv[1] if len(sys.argv) > 1 else 'all'
    outp = sys.argv[2] if len(sys.argv) > 2 else 'out.s'
    ks = []
    t, vg, ac = gen_k1.gen_k1('k1_kernel', MT=4)
    ks.append(('k1_kernel', t, vg, ac, 256, 512, gen_k1.K1_LDS))
    if which == 'all':
        import gen_k23
        t, vg, ac = gen_k23.gen_k2('k2_kernel')
        ks.append(('k2_kernel', t, vg, ac, 256, 256, gen_k23.K2_LDS))
        t, vg, ac = gen_k23.gen_k3('k3_kernel')
        ks.append(('k3_kernel', t, vg, ac, 256, 256, gen_k23.K3_LDS))
    open(outp, 'w').write(build(ks))
```

```python
from asmlib import Asm
import struct

WS_A = 0
WS_Q = 0x1400000
WS_KV = 0x1800000
WS_G = 0x1C00000
WS_FLAG = 0x1D00000
WS_BYTES = 0x2000000

X_BASE = 0
W_BASE = 65536
WST = 20480
SPARE = W_BASE + 4 * WST
K1_LDS = 163840

C1 = -2.0 * 0.7978845608028654 * 1.4426950408889634
C2 = C1 * 0.044715
LOG2E = 1.4426950408889634


def f2u(f):
    return '0x%08x' % struct.unpack('<I', struct.pack('<f', f))[0]


def gen_k1(name, opts=None):
    opts = opts or {}
    MT = 4
    A = Asm()
    accum_off = 172

    def acc(nt, t):
        return (t * 10 + nt) * 4
    misc = 160
    a_A = [0, 16]
    a_B = 32
    a_BX = [60, 72]
    vXR = [misc, misc + 1]
    vBT = [[misc + 2, misc + 3], [misc + 4, misc + 5]]
    vB5 = [misc + 6, misc + 7]
    vDX = [misc + 8, misc + 9]
    vDW = [misc + 10, misc + 11]

    def Breg(jt, par):
        if jt < 7:
            return a_B + 4 * jt
        return a_BX[par] + 4 * (jt - 7)

    A.raw(f'.globl {name}\n.p2align 8\n.type {name},@function\n{name}:')
    A('s_cmp_ge_u32 s2, 256')
    A(f's_cbranch_scc1 {name}_end')
    A('s_load_dwordx4 s[4:7], s[0:1], 0')
    A('s_load_dwordx4 s[8:11], s[0:1], 16')
    A('s_load_dwordx4 s[12:15], s[0:1], 40')
    A('s_load_dwordx2 s[60:61], s[0:1], 56')
    A('s_load_dwordx2 s[62:63], s[0:1], 88')
    A('v_lshrrev_b32 v1, 6, v0')
    A('v_and_b32 v0, 63, v0')
    A('v_readfirstlane_b32 s87, v1')
    A('s_and_b32 s85, s2, 7')
    A('s_lshr_b32 s91, s2, 3')
    A('s_and_b32 s83, s91, 3')
    A('s_lshr_b32 s86, s91, 2')
    A('s_and_b32 s88, s87, 3')
    A('s_lshr_b32 s89, s87, 2')
    A('s_and_b32 s82, s83, 1')
    A('s_waitcnt lgkmcnt(0)')
    A('s_mov_b32 s16, s4\ns_mov_b32 s17, s5\ns_mov_b32 s18, 0x400000\ns_mov_b32 s19, 0x00020000')
    A(f's_mov_b32 s40, s62\ns_mov_b32 s41, s63\ns_mov_b32 s42, {WS_BYTES}\ns_mov_b32 s43, 0x00020000')
    A('s_mov_b32 s44, s8\ns_mov_b32 s45, s9\ns_mov_b32 s46, 65536\ns_mov_b32 s47, 0x00020000')
    A('s_mov_b32 s35, 0x00020000')
    A('v_and_b32 v2, 15, v0')
    A('v_lshrrev_b32 v3, 4, v0')
    A('v_lshrrev_b32 v5, 3, v0')
    A('v_and_b32 v6, 7, v0')
    A('v_xor_b32 v6, v6, v3')
    A('v_lshlrev_b32 v7, 4, v6')
    A(f'v_lshl_add_u32 v{vDX[0]}, v5, 11, v7')
    A('v_xor_b32 v6, 4, v6')
    A('v_lshlrev_b32 v7, 4, v6')
    A(f'v_lshl_add_u32 v{vDX[1]}, v5, 11, v7')
    A('s_lshl_b32 s90, s86, 19')
    A('s_lshl_b32 s91, s87, 16')
    A('s_add_u32 s48, s90, s91')
    for q in range(1, 4):
        A(f's_add_u32 s{48 + q}, s48, {q * 16384}')
    A('s_lshl_b32 s58, s87, 12')
    A('v_lshrrev_b32 v5, 1, v2')
    A('v_xor_b32 v5, v5, v3')
    A('s_lshl_b32 s90, s88, 13')
    A('v_lshlrev_b32 v6, 7, v2')
    A('v_add_u32 v6, s90, v6')
    A(f'v_lshl_add_u32 v{vXR[0]}, v5, 4, v6')
    A('v_xor_b32 v5, 4, v5')
    A(f'v_lshl_add_u32 v{vXR[1]}, v5, 4, v6')
    A('v_lshrrev_b32 v5, 5, v0')
    A('v_and_b32 v6, 1, v3')
    A('v_lshrrev_b32 v7, 2, v0')
    A('v_and_b32 v7, 3, v7')
    A('v_lshl_add_u32 v7, v6, 2, v7')
    A('v_lshrrev_b32 v9, 1, v7')
    A('v_lshl_add_u32 v7, v5, 4, v7')
    A('v_and_b32 v8, 3, v0')
    A('v_lshlrev_b32 v8, 3, v8')
    A('s_lshl_b32 s90, s89, 1')
    for e in range(2):
        A(f's_add_u32 s91, s90, {e}')
        A('v_xor_b32 v10, s91, v9')
        A('v_lshlrev_b32 v10, 5, v10')
        A('v_lshl_add_u32 v10, v7, 7, v10')
        A(f'v_add3_u32 v{vBT[0][e]}, v10, v8, 0')
        A(f'v_add_u32 v{vBT[0][e]}, {W_BASE}, v{vBT[0][e]}')
        A(f'v_add_u32 v{vBT[1][e]}, {2 * WST}, v{vBT[0][e]}')
    A('v_xor_b32 v10, s89, v6')
    A('v_lshlrev_b32 v10, 5, v10')
    A('v_lshl_add_u32 v10, v7, 6, v10')
    A(f'v_add3_u32 v{vB5[0]}, v10, v8, 0')
    A(f'v_add_u32 v{vB5[0]}, {W_BASE + 4 * 4096}, v{vB5[0]}')
    A(f'v_add_u32 v{vB5[1]}, {2 * WST}, v{vB5[0]}')
    A('v_lshrrev_b32 v5, 3, v0')
    A('v_lshrrev_b32 v6, 2, v5')
    A('v_and_b32 v7, 3, v5')
    A('v_lshl_add_u32 v6, v6, 3, v7')
    A('v_and_b32 v7, 6, v5')
    A('v_and_b32 v8, 7, v0')
    A('v_xor_b32 v7, v7, v8')
    A('v_lshlrev_b32 v7, 4, v7')
    A('v_lshrrev_b32 v9, 2, v0')
    A('v_and_b32 v10, 3, v9')
    A('v_and_b32 v11, 4, v9')
    A('v_lshl_add_u32 v10, v11, 1, v10')
    A('v_and_b32 v12, 8, v9')
    A('v_lshrrev_b32 v12, 1, v12')
    A('v_add_u32 v10, v10, v12')
    A('v_lshrrev_b32 v11, 1, v11')
    A('v_and_b32 v12, 3, v0')
    A('v_xor_b32 v11, v11, v12')
    A('v_lshlrev_b32 v11, 4, v11')
    A('v_mul_u32_u24 v10, 7168, v10')
    A(f'v_add_u32 v{vDW[1]}, v10, v11')
    A('s_mov_b32 s76, s87')
    A('s_and_b32 s81, s87, 3')
    A('s_lshr_b32 s90, s81, 1')
    A('s_lshl_b32 s90, s90, 4')
    A('s_and_b32 s91, s81, 1')
    A('s_lshl_b32 s91, s91, 2')
    A('s_add_u32 s80, s90, s91')
    A('s_mul_i32 s79, s85, 896')
    A('s_cmp_ge_u32 s83, 2')
    A(f's_cbranch_scc1 {name}_typeA')

    def set_srd(slot, lo, hi, size):
        b = 20 + 4 * slot
        A(f's_mov_b32 s{b}, {lo}\ns_mov_b32 s{b + 1}, {hi}\ns_mov_b32 s{b + 2}, {size}\ns_mov_b32 s{b + 3}, 0x00020000')

    def set_m0(slot, sreg):
        A(f's_mov_b32 s{64 + 4 * slot}, {sreg}')
        for st in range(1, 4):
            A(f's_add_u32 s{64 + 4 * slot + st}, s{64 + 4 * slot + st - 1}, {WST}')

    def dma_x(slot):
        ops = []
        for q in range(4):
            ops.append([f's_add_u32 m0, s58, {X_BASE + slot * 32768 + q * 1024}',
                        f'buffer_load_dwordx4 v{vDX[q & 1]}, s[16:19], s{48 + q} offen lds',
                        f's_add_u32 s{48 + q}, s{48 + q}, 128'])
        return ops

    def dma_w(typ, hi, stage):
        ops = []
        for q in range(2 if hi else 3):
            srd = 20 + 4 * q
            vo = vDW[1] if (typ == 'B' and q == 2) else vDW[0]
            ops.append([f's_mov_b32 m0, s{64 + 4 * q + stage}',
                        f'buffer_load_dwordx4 v{vo}, s[{srd}:{srd + 3}], s{52 + q} offen lds',
                        f's_add_u32 s{52 + q}, s{52 + q}, s{55 + q}'])
        return ops

    def dma_pf():
        return [['s_mul_i32 s90, s2, 28',
                 's_add_u32 s90, s90, s76',
                 's_lshl_b32 s91, s2, 3',
                 's_add_u32 s91, s91, s76',
                 's_sub_u32 s91, s91, 32',
                 's_cmp_lt_u32 s76, 28',
                 's_cselect_b32 s90, s90, s91',
                 's_cselect_b32 s32, s60, s10',
                 's_cselect_b32 s33, s61, s11',
                 's_cselect_b32 s34, 1, 0',
                 's_lshr_b32 s91, s76, 3',
                 's_cmp_eq_u32 s91, 4',
                 's_cselect_b32 s91, 1, 0',
                 's_or_b32 s34, s34, s91',
                 f's_mul_i32 s34, s34, {3584 * 2048}',
                 's_lshr_b32 s91, s90, 4',
                 's_lshl_b32 s91, s91, 14',
                 's_and_b32 s90, s90, 15',
                 's_lshl_b32 s90, s90, 7',
                 's_add_u32 s90, s90, s91',
                 f's_mov_b32 m0, {SPARE + 4096}',
                 f'buffer_load_dwordx4 v{vDX[0]}, s[32:35], s90 offen lds',
                 's_add_u32 s76, s76, 8']]

    def ntiles(typ):
        if typ == 'A':
            return [('q', 0, 0), ('q', 0, 1), ('k', 1, 0), ('k', 1, 1), ('v', 2, 0), ('v', 2, 1),
                    ('G', 3, 0), ('G', 3, 1), ('U', 4, 0), ('U', 4, 1)]
        return [('G', 0, 0), ('G', 0, 1), ('G', 1, 0), ('G', 1, 1), ('G', 'h', 0),
                ('U', 2, 0), ('U', 2, 1), ('U', 3, 0), ('U', 3, 1), ('U', 'h', 1)]

    def b_reads(typ, jt, stage, par):
        kind, ch, e = ntiles(typ)[jt]
        reg = Breg(jt, par)
        out = []
        for a in range(2):
            if ch == 'h':
                base = vB5[stage >> 1]
                off = (stage & 1) * WST + e * 2048 + a * 512
            else:
                base = vBT[stage >> 1][e]
                off = (stage & 1) * WST + ch * 4096 + a * 1024
            out.append(f'ds_read_b64_tr_b16 a[{reg + 2 * a}:{reg + 2 * a + 1}], v{base} offset:{off}')
        return out

    def a_reads(kb, par):
        slot, half = (kb >> 1) & 1, kb & 1
        return [f'ds_read_b128 a[{a_A[par] + 4 * t}:{a_A[par] + 4 * t + 3}], v{vXR[half]} offset:{X_BASE + slot * 32768 + t * 2048}'
                for t in range(MT)]

    def step(typ, hi, s, rd, dma, vmwait, barrier=True):
        par = s & 1
        nm = 10 * MT
        fill = [[] for _ in range(nm)]
        if rd and not opts.get('no_reads'):
            rstage = (s + 1) % 4
            early = a_reads(s + 1, par ^ 1)
            for jt in range(7, 10):
                early += b_reads(typ, jt, rstage, par ^ 1)
            for q, ins in enumerate(early):
                fill[q].append(ins)
            for jt in range(7):
                r2 = b_reads(typ, jt, rstage, par ^ 1)
                fill[MT * jt + MT - 1].append(r2[0])
                fill[MT * jt + MT].append(r2[1])
        if dma and not opts.get('no_dma'):
            ops = []
            if s & 1:
                ops += dma_x((s >> 1) & 1)
                if s == 1 and not opts.get('no_pf'):
                    ops += dma_pf()
            ops += dma_w(typ, hi, s)
            start = MT + 6
            stride = (nm - start - 2) // len(ops)
            for q, o in enumerate(ops):
                fill[start + q * stride] += o
        tl = ntiles(typ)
        idx = 0
        for jt in range(10):
            b = Breg(jt, par)
            for t in range(MT):
                a = a_A[par] + 4 * t
                c = acc(jt, t)
                c = f'v[{c}:{c + 3}]'
                if opts.get('no_mfma'):
                    pass
                elif tl[jt][0] == 'v':
                    A(f'v_mfma_f32_16x16x32_bf16 {c}, a[{a}:{a + 3}], a[{b}:{b + 3}], {c}')
                else:
                    A(f'v_mfma_f32_16x16x32_bf16 {c}, a[{b}:{b + 3}], a[{a}:{a + 3}], {c}')
                for ins in fill[idx]:
                    A(ins)
                idx += 1
        if barrier:
            if vmwait is not None:
                A(f's_waitcnt vmcnt({vmwait}) lgkmcnt(0)')
            else:
                A('s_waitcnt lgkmcnt(0)')
            A('s_barrier')

    def body(typ, hi):
        tag = f'{name}_{typ}{hi}'
        nw = 2 if hi else 3
        npf = 0 if opts.get('no_pf') else 1
        seq = dma_x(0) + dma_w(typ, hi, 0) + dma_w(typ, hi, 1) + dma_x(1) + dma_w(typ, hi, 2) + dma_w(typ, hi, 3)
        for o in seq:
            for ins in o:
                A(ins)
        ntot = 8 + 4 * nw
        if typ == 'A':
            A(f's_waitcnt vmcnt({ntot})')
            for i in range(8):
                A(f'v_lshl_or_b32 v{100 + i}, v{109 + 2 * i}, 16, v{108 + 2 * i}')
            A('v_lshlrev_b32 v5, 4, v0')
            A('s_lshl_b32 s90, s89, 11')
            A('v_add_u32 v5, s90, v5')
            A(f'v_add_u32 v5, {SPARE}, v5')
            A('ds_write_b128 v5, v[100:103]')
            A('ds_write_b128 v5, v[104:107] offset:1024')
            A('s_waitcnt lgkmcnt(0)')
        for i in range(160):
            A(f'v_mov_b32 v{i}, 0')
        A(f's_waitcnt vmcnt({ntot - 4 - nw})')
        A('s_barrier')
        for ins in a_reads(0, 0):
            A(ins)
        for jt in range(10):
            for ins in b_reads(typ, jt, 0, 0):
                A(ins)
        A(f's_waitcnt vmcnt({4 + 2 * nw}) lgkmcnt(0)')
        A('s_barrier')
        A('s_mov_b32 s84, 7')
        A.flush_hazards()
        A.label(f'{tag}_loop')
        step(typ, hi, 0, True, True, 2 * nw)
        step(typ, hi, 1, True, True, 2 * nw + 4 + npf)
        step(typ, hi, 2, True, True, 2 * nw + npf)
        step(typ, hi, 3, True, True, 2 * nw + 4)
        A('s_sub_u32 s84, s84, 1')
        A('s_cmp_lg_u32 s84, 0')
        A(f's_cbranch_scc1 {tag}_loop')
        step(typ, hi, 0, True, False, nw)
        step(typ, hi, 1, True, False, 0)
        step(typ, hi, 2, True, False, None)
        step(typ, hi, 3, False, False, None, barrier=False)

    A('s_mul_i32 s90, s82, 384')
    A('s_add_u32 s90, s90, s79')
    A('s_cmp_ge_u32 s87, 4')
    A('s_cselect_b32 s91, 0, 128')
    A('s_add_u32 s90, s90, s91')
    A('s_mul_i32 s91, s80, 7168')
    A('s_add_u32 s52, s90, s91')
    A('s_mov_b32 s53, s52')
    set_srd(0, 's12', 's13', 1024 * 7168)
    set_srd(1, 's14', 's15', 1024 * 7168)
    A('s_cmp_ge_u32 s87, 4')
    A('s_cselect_b32 s90, 0, 4096')
    A('s_lshl_b32 s91, s81, 10')
    A('s_add_u32 s90, s90, s91')
    A(f's_add_u32 s90, s90, {W_BASE}')
    set_m0(0, 's90')
    A('s_add_u32 s90, s90, 8192')
    set_m0(1, 's90')
    A('s_and_b32 s90, s87, 2')
    A('s_cmp_eq_u32 s90, 0')
    A('s_cselect_b32 s28, s12, s14')
    A('s_cselect_b32 s29, s13, s15')
    A(f's_mov_b32 s30, {1024 * 7168}\ns_mov_b32 s31, 0x00020000')
    A('s_and_b32 s91, s87, 1')
    A(f's_mul_i32 s91, s91, {16 * 7168}')
    A('s_lshl_b32 s92, s82, 6')
    A('s_add_u32 s91, s91, s92')
    A('s_add_u32 s91, s91, s79')
    A('s_add_u32 s54, s91, 256')
    A('s_lshl_b32 s90, s81, 10')
    A(f's_add_u32 s90, s90, {W_BASE + 16384}')
    set_m0(2, 's90')
    for q in range(3):
        A(f's_mov_b32 s{55 + q}, {32 * 7168}')
    A('v_mul_u32_u24 v6, 7168, v6')
    A(f'v_add_u32 v{vDW[0]}, v6, v7')
    A('s_cmp_ge_u32 s87, 4')
    A(f's_cbranch_scc1 {name}_B1')
    body('B', 0)
    A(f's_branch {name}_epiB')
    A.label(f'{name}_B1')
    body('B', 1)
    A.label(f'{name}_epiB')
    if not opts.get('no_epi'):
        epilogue_B(A, name, acc, misc, opts)
    A(f's_branch {name}_end')

    A.label(f'{name}_typeA')
    A('s_lshl_b32 s78, s85, 1')
    A('s_add_u32 s78, s78, s82')
    A('v_lshlrev_b32 v4, 8, v3')
    A('v_lshl_add_u32 v4, v2, 1, v4')
    A('s_lshl_b32 s77, s78, 1')
    A('s_add_u32 s77, s77, s89')
    A('s_lshl_b32 s90, s77, 11')
    for ft in range(2):
        for jj in range(8):
            d = 16 * (jj >> 2) + (jj & 3)
            A(f'buffer_load_ushort v{108 + ft * 8 + jj}, v4, s[44:47], s90 offen offset:{d * 64 + ft * 32}')
    A('s_cmp_ge_u32 s87, 4')
    A(f's_cbranch_scc1 {name}_A1')
    A('s_mul_i32 s91, s80, 6144')
    A('s_lshl_b32 s90, s78, 7')
    A('s_add_u32 s52, s90, s91')
    A('s_add_u32 s53, s52, 2048')
    A('s_add_u32 s54, s52, 4096')
    A('s_lshl_b32 s90, s81, 10')
    A(f's_add_u32 s90, s90, {W_BASE}')
    for q in range(3):
        set_srd(q, 's6', 's7', 1024 * 6144)
        A(f's_mov_b32 s{55 + q}, {32 * 6144}')
        set_m0(q, 's90')
        A('s_add_u32 s90, s90, 4096')
    A('v_mul_u32_u24 v6, 6144, v6')
    A(f'v_add_u32 v{vDW[0]}, v6, v7')
    body('A', 0)
    A(f's_branch {name}_epiA')
    A.label(f'{name}_A1')
    A('s_mul_i32 s91, s80, 7168')
    A('s_lshl_b32 s90, s82, 7')
    A('s_add_u32 s90, s90, s79')
    A('s_add_u32 s90, s90, 640')
    A('s_add_u32 s52, s90, s91')
    A('s_mov_b32 s53, s52')
    set_srd(0, 's12', 's13', 1024 * 7168)
    set_srd(1, 's14', 's15', 1024 * 7168)
    A('s_lshl_b32 s90, s81, 10')
    A(f's_add_u32 s90, s90, {W_BASE + 3 * 4096}')
    for q in range(2):
        A(f's_mov_b32 s{55 + q}, {32 * 7168}')
        set_m0(q, 's90')
        A('s_add_u32 s90, s90, 4096')
    A('v_mul_u32_u24 v6, 7168, v6')
    A(f'v_add_u32 v{vDW[0]}, v6, v7')
    body('A', 1)
    A.label(f'{name}_epiA')
    if not opts.get('no_epi'):
        epilogue_A(A, name, acc, misc, opts)
    A.label(f'{name}_end')
    A('s_endpgm')
    return A.text(), 256, accum_off


def epi_common(A, misc):
    vL16 = misc
    vC1 = misc + 2
    A('v_mbcnt_lo_u32_b32 v%d, -1, 0' % vL16)
    A('v_mbcnt_hi_u32_b32 v%d, -1, v%d' % (vL16, vL16))
    A(f'v_lshlrev_b32 v{vL16}, 4, v{vL16}')
    A(f'v_mov_b32 v{vC1}, {f2u(C1)}')
    A(f'v_mov_b32 v{vC1 + 1}, {f2u(C1)}')
    A(f's_mov_b32 s98, {f2u(C2)}')
    A(f's_mov_b32 s99, {f2u(C2)}')
    A('s_lshl_b32 s90, s86, 4')
    A('s_lshl_b32 s91, s88, 2')
    A('s_add_u32 s90, s90, s91')
    A('s_mul_i32 s91, s90, 147456')
    A('s_mul_i32 s92, s85, 14')


def gelu_tile(A, misc, g, u, out2, tmp):
    vC1 = misc + 2
    for h in (0, 2):
        A(f'v_pk_mul_f32 v[{tmp + h}:{tmp + h + 1}], v[{g + h}:{g + h + 1}], v[{g + h}:{g + h + 1}]')
    for h in (0, 2):
        A(f'v_pk_fma_f32 v[{tmp + h}:{tmp + h + 1}], v[{tmp + h}:{tmp + h + 1}], s[98:99], v[{vC1}:{vC1 + 1}]')
    for h in (0, 2):
        A(f'v_pk_mul_f32 v[{tmp + h}:{tmp + h + 1}], v[{tmp + h}:{tmp + h + 1}], v[{g + h}:{g + h + 1}]')
    for r in range(4):
        A(f'v_exp_f32 v{tmp + r}, v{tmp + r}')
    for h in (0, 2):
        A(f'v_pk_mul_f32 v[{g + h}:{g + h + 1}], v[{g + h}:{g + h + 1}], v[{u + h}:{u + h + 1}]')
    for h in (0, 2):
        A(f'v_pk_add_f32 v[{tmp + h}:{tmp + h + 1}], v[{tmp + h}:{tmp + h + 1}], 1.0 op_sel_hi:[1,0]')
    for r in range(4):
        A(f'v_rcp_f32 v{tmp + r}, v{tmp + r}')
    for h in (0, 2):
        A(f'v_pk_mul_f32 v[{g + h}:{g + h + 1}], v[{g + h}:{g + h + 1}], v[{tmp + h}:{tmp + h + 1}]')
    A(f'v_cvt_pk_bf16_f32 v{out2[0]}, v{g}, v{g + 1}')
    A(f'v_cvt_pk_bf16_f32 v{out2[1]}, v{g + 2}, v{g + 3}')


def epilogue_B(A, name, acc, misc, opts):
    vL16 = misc
    T0, T1 = misc + 4, misc + 8
    ST = opts.get('st_mod', '')
    epi_common(A, misc)
    A('s_mul_i32 s93, s82, 6')
    A('s_add_u32 s93, s93, s92')
    A('s_add_u32 s93, s93, s89')
    A('s_lshl_b32 s93, s93, 10')
    A('s_add_u32 s94, s93, s91')
    A('s_add_u32 s93, s92, s82')
    A('s_add_u32 s93, s93, 4')
    A('s_lshl_b32 s93, s93, 10')
    A('s_add_u32 s95, s93, s91')
    A('s_lshl_b32 s93, s89, 3')
    A('s_add_u32 s95, s95, s93')
    for t in range(4):
        for p in range(2):
            g0, g1, u0, u1 = acc(2 * p, t), acc(2 * p + 1, t), acc(5 + 2 * p, t), acc(6 + 2 * p, t)
            gelu_tile(A, misc, g0, u0, [u0, u0 + 1], T0)
            gelu_tile(A, misc, g1, u1, [u0 + 2, u0 + 3], T1)
            A(f'buffer_store_dwordx4 v[{u0}:{u0 + 3}], v{vL16}, s[40:43], s94 offen offset:{p * 2048}{ST}')
        g0, u0 = acc(4, t), acc(9, t)
        gelu_tile(A, misc, g0, u0, [u0, u0 + 1], T0)
        A(f'buffer_store_dwordx2 v[{u0}:{u0 + 1}], v{vL16}, s[40:43], s95 offen{ST}')
        if t < 3:
            A('s_add_u32 s94, s94, 147456')
            A('s_add_u32 s95, s95, 147456')


def epilogue_A(A, name, acc, misc, opts):
    vL16 = misc
    T0, T1 = misc + 4, misc + 8
    ST = opts.get('st_mod', '')
    epi_common(A, misc)
    aW = 76
    aKV = 0
    A('s_lshl_b32 s97, s89, 11')
    A(f's_add_u32 s97, s97, {SPARE}')
    A(f'v_add_u32 v{T0}, s97, v{vL16}')
    A(f'ds_read_b128 a[{aW}:{aW + 3}], v{T0}')
    A(f'ds_read_b128 a[{aW + 4}:{aW + 7}], v{T0} offset:1024')
    A('s_lshl_b32 s93, s82, 1')
    A('s_add_u32 s93, s93, s92')
    A('s_add_u32 s93, s93, s89')
    A('s_add_u32 s93, s93, 10')
    A('s_lshl_b32 s93, s93, 10')
    A('s_add_u32 s94, s93, s91')
    A('s_lshl_b32 s96, s77, 7')
    A('s_add_u32 s96, s96, s90')
    A('s_lshl_b32 s96, s96, 10')
    A(f's_add_u32 s96, s96, {WS_Q}')

    def pack(d, a, b):
        A(f'v_cvt_pk_bf16_f32 v{d}, v{a}, v{a + 1}')
        A(f'v_cvt_pk_bf16_f32 v{d + 1}, v{a + 2}, v{a + 3}')
        A(f'v_cvt_pk_bf16_f32 v{d + 2}, v{b}, v{b + 1}')
        A(f'v_cvt_pk_bf16_f32 v{d + 3}, v{b + 2}, v{b + 3}')
    for t in range(4):
        k0, k1 = acc(2, t), acc(3, t)
        pack(k0, k0, k1)
    for t in range(4):
        q0, q1 = acc(0, t), acc(1, t)
        pack(q0, q0, q1)
        A(f'buffer_store_dwordx4 v[{q0}:{q0 + 3}], v{vL16}, s[40:43], s96 offen offset:{t * 1024}{ST}')
    A('s_waitcnt lgkmcnt(0)')
    for t in range(4):
        k0 = acc(2, t)
        p0, p1 = acc(1, t), acc(3, t)
        A(f'v_mfma_f32_16x16x32_bf16 v[{p0}:{p0 + 3}], a[{aW}:{aW + 3}], v[{k0}:{k0 + 3}], 0')
        A(f'v_mfma_f32_16x16x32_bf16 v[{p1}:{p1 + 3}], a[{aW + 4}:{aW + 7}], v[{k0}:{k0 + 3}], 0')
    for tp in (0, 2):
        for dt in range(2):
            a0, a1 = acc(4 + dt, tp), acc(4 + dt, tp + 1)
            pack(a0, a0, a1)
    for t in range(4):
        g0, g1, u0, u1 = acc(6, t), acc(7, t), acc(8, t), acc(9, t)
        gelu_tile(A, misc, g0, u0, [u0, u0 + 1], T0)
        gelu_tile(A, misc, g1, u1, [u0 + 2, u0 + 3], T1)
        A(f'buffer_store_dwordx4 v[{u0}:{u0 + 3}], v{vL16}, s[40:43], s94 offen{ST}')
        if t < 3:
            A('s_add_u32 s94, s94, 147456')
    ones = acc(4, 1)
    for r in range(4):
        A(f'v_mov_b32 v{ones + r}, 0x3f803f80')
    idr = acc(5, 1)
    assert acc(6, 1) == idr + 4
    A(f'v_lshrrev_b32 v{T0}, 4, v{vL16}')
    A(f'v_and_b32 v{T0 + 1}, 15, v{T0}')
    A(f'v_lshrrev_b32 v{T0 + 2}, 4, v{T0}')
    A(f'v_lshrrev_b32 v{T0 + 3}, 2, v{T0 + 1}')
    A(f'v_and_b32 v{T1}, 1, v{T0 + 1}')
    A(f'v_lshlrev_b32 v{T1}, 4, v{T1}')
    A(f'v_mov_b32 v{T1 + 1}, 0x3f80')
    A(f'v_lshlrev_b32 v{T1 + 1}, v{T1}, v{T1 + 1}')
    A(f'v_cmp_eq_u32 vcc, v{T0 + 2}, v{T0 + 3}')
    A(f'v_cndmask_b32 v{T1 + 1}, 0, v{T1 + 1}, vcc')
    A(f'v_and_b32 v{T1 + 2}, 2, v{T0 + 1}')
    A(f'v_cmp_eq_u32 vcc, 0, v{T1 + 2}')
    A(f'v_cndmask_b32 v{idr + 2}, 0, v{T1 + 1}, vcc')
    A(f'v_cndmask_b32 v{idr + 3}, v{T1 + 1}, 0, vcc')
    for r in (0, 1, 4, 5):
        A(f'v_mov_b32 v{idr + r}, 0')
    I = [idr + 2, idr]
    A(f's_mov_b32 s96, {f2u(LOG2E)}')
    A(f's_mov_b32 s97, {f2u(LOG2E)}')
    phi = [acc(0, 0), acc(0, 1), acc(0, 2), acc(0, 3)]
    EP = [acc(6, 0), acc(6, 2)]
    EN = [acc(6, 3), acc(4, 3)]
    TR = [[acc(9, 0), acc(9, 1), acc(9, 2), acc(9, 3)], [acc(2, 0), acc(2, 1), acc(2, 2), acc(2, 3)]]
    SC = [T0, T1]
    for t in range(4):
        e = t & 1
        p0, p1 = acc(1, t), acc(3, t)
        P = [p0 + r for r in range(4)] + [p1 + r for r in range(4)]
        ep, en = EP[e], EN[e]
        mx, mn, tm, tn = SC[e], SC[e] + 1, SC[e] + 2, SC[e] + 3
        if opts.get('round_p'):
            for i in range(0, 8, 2):
                A(f'v_cvt_pk_bf16_f32 v{ep + i}, v{P[i]}, v{P[i + 1]}')
            for i in range(0, 8, 2):
                A(f'v_lshlrev_b32 v{P[i]}, 16, v{ep + i}')
                A(f'v_and_b32 v{P[i + 1]}, 0xffff0000, v{ep + i}')
        A(f'v_max3_f32 v{mx}, v{P[0]}, v{P[1]}, v{P[2]}')
        A(f'v_min3_f32 v{mn}, v{P[0]}, v{P[1]}, v{P[2]}')
        A(f'v_max3_f32 v{mx}, v{mx}, v{P[3]}, v{P[4]}')
        A(f'v_min3_f32 v{mn}, v{mn}, v{P[3]}, v{P[4]}')
        A(f'v_max3_f32 v{mx}, v{mx}, v{P[5]}, v{P[6]}')
        A(f'v_min3_f32 v{mn}, v{mn}, v{P[5]}, v{P[6]}')
        A(f'v_max_f32 v{mx}, v{mx}, v{P[7]}')
        A(f'v_min_f32 v{mn}, v{mn}, v{P[7]}')
        for sw in ('v_permlane16_swap_b32', 'v_permlane32_swap_b32'):
            A(f'v_mov_b32 v{tm}, v{mx}')
            A(f'v_mov_b32 v{tn}, v{mn}')
            A(f'{sw} v{mx}, v{tm}')
            A(f'{sw} v{mn}, v{tn}')
            A(f'v_max_f32 v{mx}, v{mx}, v{tm}')
            A(f'v_min_f32 v{mn}, v{mn}, v{tn}')
        A(f'v_pk_mul_f32 v[{mx}:{mn}], v[{mx}:{mn}], s[96:97]')
        for h in range(0, 8, 2):
            src = P[h]
            A(f'v_pk_fma_f32 v[{ep + h}:{ep + h + 1}], v[{src}:{src + 1}], s[96:97], v[{mx}:{mn}] op_sel:[0,0,0] op_sel_hi:[1,1,0] neg_lo:[0,0,1] neg_hi:[0,0,1]')
            A(f'v_pk_fma_f32 v[{en + h}:{en + h + 1}], v[{src}:{src + 1}], s[96:97], v[{mx}:{mn}] op_sel:[0,0,1] op_sel_hi:[1,1,1] neg_lo:[1,0,0] neg_hi:[1,0,0]')
        for i in range(8):
            A(f'v_exp_f32 v{ep + i}, v{ep + i}')
            A(f'v_exp_f32 v{en + i}, v{en + i}')
        A(f'v_pk_add_f32 v[{p0}:{p0 + 1}], v[{ep}:{ep + 1}], v[{ep + 2}:{ep + 3}]')
        A(f'v_pk_add_f32 v[{p0 + 2}:{p0 + 3}], v[{ep + 4}:{ep + 5}], v[{ep + 6}:{ep + 7}]')
        A(f'v_pk_add_f32 v[{p1}:{p1 + 1}], v[{en}:{en + 1}], v[{en + 2}:{en + 3}]')
        A(f'v_pk_add_f32 v[{p1 + 2}:{p1 + 3}], v[{en + 4}:{en + 5}], v[{en + 6}:{en + 7}]')
        A(f'v_pk_add_f32 v[{p0}:{p0 + 1}], v[{p0}:{p0 + 1}], v[{p0 + 2}:{p0 + 3}]')
        A(f'v_pk_add_f32 v[{p1}:{p1 + 1}], v[{p1}:{p1 + 1}], v[{p1 + 2}:{p1 + 3}]')
        A(f'v_add_f32 v{mx}, v{p0}, v{p0 + 1}')
        A(f'v_add_f32 v{mn}, v{p1}, v{p1 + 1}')
        for sw in ('v_permlane16_swap_b32', 'v_permlane32_swap_b32'):
            A(f'v_mov_b32 v{tm}, v{mx}')
            A(f'v_mov_b32 v{tn}, v{mn}')
            A(f'{sw} v{mx}, v{tm}')
            A(f'{sw} v{mn}, v{tn}')
            A(f'v_add_f32 v{mx}, v{mx}, v{tm}')
            A(f'v_add_f32 v{mn}, v{mn}, v{tn}')
        A(f'v_rcp_f32 v{mx}, v{mx}')
        A(f'v_rcp_f32 v{mn}, v{mn}')
        for h in range(0, 8, 2):
            A(f'v_pk_mul_f32 v[{ep + h}:{ep + h + 1}], v[{ep + h}:{ep + h + 1}], v[{mx}:{mn}] op_sel:[0,0] op_sel_hi:[1,0]')
            A(f'v_pk_mul_f32 v[{en + h}:{en + h + 1}], v[{en + h}:{en + h + 1}], v[{mx}:{mn}] op_sel:[0,1] op_sel_hi:[1,1]')
        for i in range(4):
            A(f'v_cvt_pk_bf16_f32 v{p0 + i}, v{ep + 2 * i}, v{ep + 2 * i + 1}')
            A(f'v_cvt_pk_bf16_f32 v{p1 + i}, v{en + 2 * i}, v{en + 2 * i + 1}')
        tr = TR[e]
        for F in range(4):
            src = p0 if F < 2 else p1
            ih = I[F & 1]
            A(f'v_mfma_f32_16x16x32_bf16 v[{tr[F]}:{tr[F] + 3}], v[{src}:{src + 3}], v[{ih}:{ih + 3}], 0')
        if t & 1:
            for tt in (t - 1, t):
                tr = TR[tt & 1]
                h = (tt & 1) * 2
                for F in range(4):
                    A(f'v_cvt_pk_bf16_f32 v{phi[F] + h}, v{tr[F]}, v{tr[F] + 1}')
                    A(f'v_cvt_pk_bf16_f32 v{phi[F] + h + 1}, v{tr[F] + 2}, v{tr[F] + 3}')
            tp = t - 1
            for F in range(4):
                for dt in range(3):
                    b = acc(4 + dt, tp) if dt < 2 else ones
                    c = aKV + (F * 3 + dt) * 4
                    cin = '0' if tp == 0 else f'a[{c}:{c + 3}]'
                    A(f'v_mfma_f32_16x16x32_bf16 a[{c}:{c + 3}], v[{phi[F]}:{phi[F] + 3}], v[{b}:{b + 3}], {cin}')
    A('s_mul_i32 s97, s87, 12288')
    A(f'v_add_u32 v{T0}, s97, v{vL16}')
    for i in range(12):
        A(f'ds_write_b128 v{T0}, a[{aKV + 4 * i}:{aKV + 4 * i + 3}] offset:{i * 1024}')
    A('s_waitcnt lgkmcnt(0)')
    A('s_barrier')
    A('s_lshl_b32 s96, s77, 3')
    A('s_add_u32 s96, s96, s86')
    A('s_mul_i32 s96, s96, 12288')
    A(f's_add_u32 s96, s96, {WS_KV}')
    A('s_mul_i32 s97, s88, 3072')
    A('s_add_u32 s96, s96, s97')
    A('s_mul_i32 s93, s89, 49152')
    A('s_add_u32 s97, s97, s93')
    A(f'v_add_u32 v{T0}, s97, v{vL16}')
    for e in range(3):
        for p in range(4):
            b = 16 * e + 4 * p
            A(f'ds_read_b128 v[{b}:{b + 3}], v{T0} offset:{p * 12288 + e * 1024}')
    A('s_waitcnt lgkmcnt(0)')
    for e in range(3):
        b = 16 * e
        for h in (0, 2):
            A(f'v_pk_add_f32 v[{b + h}:{b + h + 1}], v[{b + h}:{b + h + 1}], v[{b + 4 + h}:{b + 5 + h}]')
            A(f'v_pk_add_f32 v[{b + 8 + h}:{b + 9 + h}], v[{b + 8 + h}:{b + 9 + h}], v[{b + 12 + h}:{b + 13 + h}]')
        for h in (0, 2):
            A(f'v_pk_add_f32 v[{b + h}:{b + h + 1}], v[{b + h}:{b + h + 1}], v[{b + 8 + h}:{b + 9 + h}]')
        A(f'buffer_store_dwordx4 v[{b}:{b + 3}], v{vL16}, s[40:43], s96 offen offset:{e * 1024}{ST}')
```

```python
from asmlib import Asm
from gen_k1b import WS_A, WS_Q, WS_KV, WS_G, WS_BYTES, f2u, LOG2E

K2_LDS = 8192
K3_LDS = 131072
DPP = ' row_mask:0xf bank_mask:0xf'


def gen_k2(name, opts=None):
    opts = opts or {}
    A = Asm()
    A.raw(f'.globl {name}\n.p2align 8\n.type {name},@function\n{name}:')
    A('s_cmp_ge_u32 s2, 256')
    A(f's_cbranch_scc1 {name}_end')
    A('s_load_dwordx2 s[4:5], s[0:1], 0')
    A('s_load_dwordx2 s[8:9], s[0:1], 16')
    A('s_load_dwordx2 s[6:7], s[0:1], 64')
    A('s_load_dwordx2 s[10:11], s[0:1], 88')
    A('v_lshrrev_b32 v1, 6, v0')
    A('v_and_b32 v0, 63, v0')
    A('v_readfirstlane_b32 s87, v1')
    A('s_and_b32 s90, s2, 7')
    A('s_lshr_b32 s91, s2, 3')
    A('s_and_b32 s92, s91, 3')
    A('s_lshl_b32 s85, s90, 2')
    A('s_add_u32 s85, s85, s92')
    A('s_lshr_b32 s86, s91, 2')
    A('s_waitcnt lgkmcnt(0)')
    A('s_mov_b32 s16, s4\ns_mov_b32 s17, s5\ns_mov_b32 s18, 0x400000\ns_mov_b32 s19, 0x00020000')
    A('s_mov_b32 s20, s6\ns_mov_b32 s21, s7\ns_mov_b32 s22, 2048\ns_mov_b32 s23, 0x00020000')
    A(f's_mov_b32 s40, s10\ns_mov_b32 s41, s11\ns_mov_b32 s42, {WS_BYTES}\ns_mov_b32 s43, 0x00020000')
    A('s_mov_b32 s44, s8\ns_mov_b32 s45, s9\ns_mov_b32 s46, 65536\ns_mov_b32 s47, 0x00020000')
    A('v_lshlrev_b32 v1, 4, v0')
    if opts.get('k2_pf'):
        A('s_load_dwordx2 s[12:13], s[0:1], 24')
        A('s_load_dwordx2 s[14:15], s[0:1], 56')
        A('s_waitcnt lgkmcnt(0)')
        A('s_mov_b32 s24, s14\ns_mov_b32 s25, s15\ns_mov_b32 s26, %d\ns_mov_b32 s27, 0x00020000' % (3584 * 2048))
        A('s_mov_b32 s28, s12\ns_mov_b32 s29, s13\ns_mov_b32 s30, %d\ns_mov_b32 s31, 0x00020000' % (1024 * 2048))
        A('s_lshl_b32 s90, s2, 2')
        A('s_add_u32 s90, s90, s87')
        A('s_mul_i32 s91, s90, 7168')
        for i in range(7):
            A(f's_add_u32 s92, s91, {i * 1024}')
            A(f'buffer_load_dwordx4 v[{200 + 4 * i}:{203 + 4 * i}], v1, s[24:27], s92 offen')
        A('s_lshl_b32 s91, s90, 11')
        for i in range(2):
            A(f'buffer_load_dwordx4 v[{230 + 4 * i}:{233 + 4 * i}], v1, s[28:31], s91 offen offset:{i * 1024}')
    A('s_mul_i32 s90, s85, 98304')
    A('s_mul_i32 s91, s87, 3072')
    A('s_add_u32 s90, s90, s91')
    A(f's_add_u32 s90, s90, {WS_KV}')
    for p in range(8):
        for e in range(3):
            A(f'buffer_load_dwordx4 v[{100 + (p * 3 + e) * 4}:{103 + (p * 3 + e) * 4}], v1, s[40:43], s90 offen offset:{e * 1024}')
        if p < 7:
            A('s_add_u32 s90, s90, 12288')
    A('v_and_b32 v2, 15, v0')
    A('v_lshrrev_b32 v3, 4, v0')
    A('v_lshlrev_b32 v4, 8, v3')
    A('v_lshl_add_u32 v4, v2, 1, v4')
    A('s_lshl_b32 s91, s85, 11')
    for ft in range(2):
        for jj in range(8):
            d = 16 * (jj >> 2) + (jj & 3)
            A(f'buffer_load_ushort v{20 + ft * 8 + jj}, v4, s[44:47], s91 offen offset:{d * 64 + ft * 32}')
    A('s_lshl_b32 s92, s86, 4')
    A('s_lshl_b32 s93, s87, 2')
    A('s_add_u32 s92, s92, s93')
    A('s_lshl_b32 s93, s85, 7')
    A('s_add_u32 s93, s93, s92')
    A('s_lshl_b32 s93, s93, 10')
    A(f's_add_u32 s93, s93, {WS_Q}')
    for t in range(4):
        A(f'buffer_load_dwordx4 v[{40 + 4 * t}:{43 + 4 * t}], v1, s[40:43], s93 offen offset:{t * 1024}')
    A('s_lshl_b32 s94, s86, 8')
    A('s_lshl_b32 s95, s85, 3')
    A('s_add_u32 s94, s94, s95')
    A('s_lshl_b32 s95, s87, 1')
    A('s_add_u32 s94, s94, s95')
    A('s_lshl_b32 s95, s94, 11')
    for e in range(2):
        for hf in range(2):
            A(f'buffer_load_dwordx4 v[{60 + (e * 2 + hf) * 4}:{63 + (e * 2 + hf) * 4}], v1, s[16:19], s95 offen offset:{e * 2048 + hf * 1024}')
    for hf in range(2):
        A(f'buffer_load_dwordx4 v[{76 + hf * 4}:{79 + hf * 4}], v1, s[20:23], 0 offen offset:{hf * 1024}')
    A('s_waitcnt vmcnt(26)')
    for p in range(1, 8):
        for i in range(12):
            A(f'v_add_f32 v{100 + i}, v{100 + i}, v{100 + p * 12 + i}')
    for e in range(3):
        A(f'v_cvt_pk_bf16_f32 v{100 + 4 * e}, v{100 + 4 * e}, v{101 + 4 * e}')
        A(f'v_cvt_pk_bf16_f32 v{101 + 4 * e}, v{102 + 4 * e}, v{103 + 4 * e}')
    A('s_lshr_b32 s90, s87, 1')
    A('s_lshl_b32 s90, s90, 10')
    A('s_and_b32 s91, s87, 1')
    A('s_lshl_b32 s91, s91, 3')
    A('s_add_u32 s90, s90, s91')
    A('v_add_u32 v5, s90, v1')
    for e in range(3):
        A(f'ds_write_b64 v5, v[{100 + 4 * e}:{101 + 4 * e}] offset:{e * 2048}')
    A('s_waitcnt vmcnt(10) lgkmcnt(0)')
    A('s_barrier')
    for i in range(6):
        A(f'ds_read_b128 v[{120 + 4 * i}:{123 + 4 * i}], v1 offset:{i * 1024}')
    for i in range(8):
        A(f'v_lshl_or_b32 v{10 + i}, v{21 + 2 * i}, 16, v{20 + 2 * i}')
    A('s_waitcnt vmcnt(0)')
    for e in range(2):
        acc = 84 + e
        A(f'v_mov_b32 v{acc}, 0')
        for i in range(8):
            xr, gr = 60 + e * 8 + i, 76 + i
            A(f'v_lshlrev_b32 v86, 16, v{xr}')
            A(f'v_lshlrev_b32 v87, 16, v{gr}')
            A(f'v_fmac_f32 v{acc}, v86, v87')
            A(f'v_and_b32 v86, 0xffff0000, v{xr}')
            A(f'v_and_b32 v87, 0xffff0000, v{gr}')
            A(f'v_fmac_f32 v{acc}, v86, v87')
    for sh in (8, 4, 2, 1):
        for e in range(2):
            A(f'v_add_f32_dpp v{84 + e}, v{84 + e}, v{84 + e} row_ror:{sh}' + DPP)
    for e in range(2):
        for (sw) in ('v_permlane16_swap_b32', 'v_permlane32_swap_b32'):
            A(f'v_mov_b32 v86, v{84 + e}')
            A(f'{sw} v{84 + e}, v86')
            A(f'v_add_f32 v{84 + e}, v{84 + e}, v86')
    A('v_cvt_pk_bf16_f32 v86, v84, v85')
    A('v_lshlrev_b32 v84, 16, v86')
    A('v_and_b32 v85, 0xffff0000, v86')
    for e in range(2):
        A(f'v_mul_f32 v{84 + e}, {f2u(-LOG2E)}, v{84 + e}')
        A(f'v_exp_f32 v{84 + e}, v{84 + e}')
        A(f'v_add_f32 v{84 + e}, 1.0, v{84 + e}')
        A(f'v_rcp_f32 v{84 + e}, v{84 + e}')
    A('v_cvt_pk_bf16_f32 v86, v84, v85')
    A('v_lshlrev_b32 v84, 16, v86')
    A('v_and_b32 v85, 0xffff0000, v86')
    A('s_lshl_b32 s95, s94, 2')
    A(f's_add_u32 s95, s95, {WS_G}')
    A('v_mov_b32 v86, 0')
    A('s_mov_b64 exec, 1')
    A('buffer_store_dwordx2 v[84:85], v86, s[40:43], s95 offen')
    A('s_mov_b64 exec, -1')
    A('s_waitcnt lgkmcnt(0)')
    A(f's_mov_b32 s97, {f2u(LOG2E)}')
    A('s_mul_i32 s96, s92, 147456')
    A('s_add_u32 s95, s85, 112')
    A('s_lshl_b32 s95, s95, 10')
    A('s_add_u32 s96, s96, s95')
    for t in range(4):
        q = 40 + 4 * t
        B = 150 + t * 24
        P = [B + i for i in range(8)]
        ep = [B + 8 + i for i in range(8)]
        en = [B + 16 + i for i in range(8)]
        A(f'v_mfma_f32_16x16x32_bf16 v[{P[0]}:{P[3]}], v[10:13], v[{q}:{q + 3}], 0')
        A(f'v_mfma_f32_16x16x32_bf16 v[{P[4]}:{P[7]}], v[14:17], v[{q}:{q + 3}], 0')
    for t in range(4):
        B = 150 + t * 24
        P = [B + i for i in range(8)]
        ep = [B + 8 + i for i in range(8)]
        en = [B + 16 + i for i in range(8)]
        mx, mn, tm, tn = 60, 61, 62, 63
        for i in range(0, 8, 2):
            A(f'v_cvt_pk_bf16_f32 v{ep[i]}, v{P[i]}, v{P[i + 1]}')
        for i in range(0, 8, 2):
            A(f'v_lshlrev_b32 v{P[i]}, 16, v{ep[i]}')
            A(f'v_and_b32 v{P[i + 1]}, 0xffff0000, v{ep[i]}')
        A(f'v_max3_f32 v{mx}, v{P[0]}, v{P[1]}, v{P[2]}')
        A(f'v_min3_f32 v{mn}, v{P[0]}, v{P[1]}, v{P[2]}')
        A(f'v_max3_f32 v{mx}, v{mx}, v{P[3]}, v{P[4]}')
        A(f'v_min3_f32 v{mn}, v{mn}, v{P[3]}, v{P[4]}')
        A(f'v_max3_f32 v{mx}, v{mx}, v{P[5]}, v{P[6]}')
        A(f'v_min3_f32 v{mn}, v{mn}, v{P[5]}, v{P[6]}')
        A(f'v_max_f32 v{mx}, v{mx}, v{P[7]}')
        A(f'v_min_f32 v{mn}, v{mn}, v{P[7]}')
        for sw in ('v_permlane16_swap_b32', 'v_permlane32_swap_b32'):
            A(f'v_mov_b32 v{tm}, v{mx}')
            A(f'v_mov_b32 v{tn}, v{mn}')
            A(f'{sw} v{mx}, v{tm}')
            A(f'{sw} v{mn}, v{tn}')
            A(f'v_max_f32 v{mx}, v{mx}, v{tm}')
            A(f'v_min_f32 v{mn}, v{mn}, v{tn}')
        for i in range(8):
            A(f'v_sub_f32 v{ep[i]}, v{P[i]}, v{mx}')
            A(f'v_sub_f32 v{en[i]}, v{mn}, v{P[i]}')
        for i in range(8):
            A(f'v_mul_f32 v{ep[i]}, s97, v{ep[i]}')
            A(f'v_mul_f32 v{en[i]}, s97, v{en[i]}')
        for i in range(8):
            A(f'v_exp_f32 v{ep[i]}, v{ep[i]}')
            A(f'v_exp_f32 v{en[i]}, v{en[i]}')
        A(f'v_add_f32 v{mx}, v{ep[0]}, v{ep[1]}')
        A(f'v_add_f32 v{mn}, v{en[0]}, v{en[1]}')
        for i in range(2, 8):
            A(f'v_add_f32 v{mx}, v{mx}, v{ep[i]}')
            A(f'v_add_f32 v{mn}, v{mn}, v{en[i]}')
        for sw in ('v_permlane16_swap_b32', 'v_permlane32_swap_b32'):
            A(f'v_mov_b32 v{tm}, v{mx}')
            A(f'v_mov_b32 v{tn}, v{mn}')
            A(f'{sw} v{mx}, v{tm}')
            A(f'{sw} v{mn}, v{tn}')
            A(f'v_add_f32 v{mx}, v{mx}, v{tm}')
            A(f'v_add_f32 v{mn}, v{mn}, v{tn}')
        A(f'v_rcp_f32 v{mx}, v{mx}')
        A(f'v_rcp_f32 v{mn}, v{mn}')
        for i in range(8):
            A(f'v_mul_f32 v{ep[i]}, v{ep[i]}, v{mx}')
            A(f'v_mul_f32 v{en[i]}, v{en[i]}, v{mn}')
        for i in range(4):
            A(f'v_cvt_pk_bf16_f32 v{P[i]}, v{ep[2 * i]}, v{ep[2 * i + 1]}')
            A(f'v_cvt_pk_bf16_f32 v{P[4 + i]}, v{en[2 * i]}, v{en[2 * i + 1]}')
        dsts = [ep[0], ep[4], en[0]]
        for b in range(2):
            for dt in range(3):
                kf = 120 + 4 * (dt * 2 + b)
                d = dsts[dt]
                cin = '0' if b == 0 else f'v[{d}:{d + 3}]'
                A(f'v_mfma_f32_16x16x32_bf16 v[{d}:{d + 3}], v[{kf}:{kf + 3}], v[{P[4 * b]}:{P[4 * b + 3]}], {cin}')
    for t in range(4):
        B = 150 + t * 24
        P = [B + i for i in range(8)]
        ep = [B + 8 + i for i in range(8)]
        en = [B + 16 + i for i in range(8)]
        A(f'v_cvt_pk_bf16_f32 v{en[4]}, v{en[0]}, v{en[0]}')
        A(f'v_lshlrev_b32 v{en[4]}, 16, v{en[4]}')
        A(f'v_add_f32 v{en[4]}, {f2u(1e-6)}, v{en[4]}')
        A(f'v_cvt_pk_bf16_f32 v{en[4]}, v{en[4]}, v{en[4]}')
        A(f'v_lshlrev_b32 v{en[4]}, 16, v{en[4]}')
        A(f'v_rcp_f32 v{en[4]}, v{en[4]}')
        for i in range(0, 8, 2):
            A(f'v_cvt_pk_bf16_f32 v{P[i]}, v{ep[i]}, v{ep[i + 1]}')
        for i in range(0, 8, 2):
            A(f'v_lshlrev_b32 v{ep[i]}, 16, v{P[i]}')
            A(f'v_and_b32 v{ep[i + 1]}, 0xffff0000, v{P[i]}')
        for i in range(8):
            A(f'v_mul_f32 v{ep[i]}, v{ep[i]}, v{en[4]}')
        for i in range(4):
            A(f'v_cvt_pk_bf16_f32 v{P[i]}, v{ep[2 * i]}, v{ep[2 * i + 1]}')
        A(f'buffer_store_dwordx4 v[{P[0]}:{P[3]}], v1, s[40:43], s96 offen')
        if t < 3:
            A('s_add_u32 s96, s96, 147456')
    A.label(f'{name}_end')
    A('s_endpgm')
    return A.text(), 248, 248


class VM:
    def __init__(self):
        self.n = 0
        self.pos = {}
    def issue(self, tag=None):
        self.n += 1
        if tag is not None:
            self.pos[tag] = self.n
    def cnt(self, tag):
        return self.n - self.pos[tag]


def gen_k3(name, D=14, opts=None):
    opts = opts or {}
    A = Asm()
    A.raw(f'.globl {name}\n.p2align 8\n.type {name},@function\n{name}:')
    A('s_cmp_ge_u32 s2, 256')
    A(f's_cbranch_scc1 {name}_end')
    A('s_load_dwordx2 s[4:5], s[0:1], 24')
    A('s_load_dwordx2 s[6:7], s[0:1], 56')
    A('s_load_dwordx2 s[8:9], s[0:1], 72')
    A('s_load_dwordx2 s[10:11], s[0:1], 88')
    A('v_lshrrev_b32 v1, 6, v0')
    A('v_and_b32 v0, 63, v0')
    A('v_readfirstlane_b32 s87, v1')
    A('s_and_b32 s90, s2, 7')
    A('s_lshr_b32 s91, s2, 3')
    A('s_lshr_b32 s92, s90, 1')
    A('s_lshl_b32 s92, s92, 2')
    A('s_and_b32 s93, s91, 3')
    A('s_add_u32 s86, s92, s93')
    A('s_and_b32 s92, s90, 1')
    A('s_lshl_b32 s92, s92, 3')
    A('s_lshr_b32 s93, s91, 2')
    A('s_add_u32 s85, s92, s93')
    A('s_waitcnt lgkmcnt(0)')
    A('s_mov_b32 s16, s6\ns_mov_b32 s17, s7\ns_mov_b32 s18, %d\ns_mov_b32 s19, 0x00020000' % (3584 * 2048))
    A('s_mov_b32 s20, s4\ns_mov_b32 s21, s5\ns_mov_b32 s22, %d\ns_mov_b32 s23, 0x00020000' % (1024 * 2048))
    A('s_mov_b32 s24, s8\ns_mov_b32 s25, s9\ns_mov_b32 s26, 0x400000\ns_mov_b32 s27, 0x00020000')
    A(f's_mov_b32 s40, s10\ns_mov_b32 s41, s11\ns_mov_b32 s42, {WS_BYTES}\ns_mov_b32 s43, 0x00020000')
    accB, accA = 0, 32
    NB = 3
    vB = 64
    vA = vB + 16 * NB
    misc = vA + D * 8
    vL16, vDW, vG = misc, misc + 1, misc + 2
    vRB = misc + 4
    vOut = misc + 12
    nv = misc + 16
    A(f'v_lshlrev_b32 v{vL16}, 4, v0')
    A('v_lshrrev_b32 v2, 3, v0')
    A('v_and_b32 v3, 6, v2')
    A('v_and_b32 v4, 7, v0')
    A('v_xor_b32 v4, v4, v3')
    A('v_lshlrev_b32 v4, 4, v4')
    A('v_lshl_add_u32 v4, v2, 11, v4')
    A('s_lshl_b32 s90, s85, 7')
    A(f'v_add_u32 v{vDW}, s90, v4')
    A('s_lshl_b32 s48, s87, 14')
    A('s_lshl_b32 s62, s87, 10')
    A('v_lshrrev_b32 v2, 2, v0')
    A('v_lshrrev_b32 v3, 1, v2')
    A('v_and_b32 v3, 3, v3')
    A('v_and_b32 v4, 3, v0')
    A('v_lshlrev_b32 v4, 3, v4')
    A('v_lshl_add_u32 v4, v2, 7, v4')
    for T in range(4):
        A(f'v_xor_b32 v5, {T}, v3')
        A(f'v_lshl_add_u32 v{vRB + T}, v5, 5, v4')
        A(f'v_add_u32 v{vRB + 4 + T}, 0x10000, v{vRB + T}')
    A('s_lshl_b32 s92, s86, 3')
    A('s_lshl_b32 s93, s87, 1')
    A('s_add_u32 s92, s92, s93')
    A('s_mul_i32 s50, s92, 147456')
    A('s_add_u32 s51, s50, 147456')
    A('v_and_b32 v2, 15, v0')
    A('v_lshlrev_b32 v3, 2, v2')
    A('s_lshl_b32 s93, s92, 6')
    A(f's_add_u32 s93, s93, {WS_G}')
    vm = VM()
    A(f'buffer_load_dword v{vG}, v3, s[40:43], s93 offen')
    A(f'buffer_load_dword v{vG + 1}, v3, s[40:43], s93 offen offset:64')
    vm.issue(); vm.issue('g')
    A('v_lshrrev_b32 v3, 4, v0')
    A('v_lshlrev_b32 v3, 3, v3')
    A('v_lshl_add_u32 v3, v2, 11, v3')
    A('s_lshl_b32 s93, s92, 15')
    A('s_add_u32 s93, s93, s90')
    A(f'v_add_u32 v{vOut}, s93, v3')

    BG = [(32 * p, 32 * p + 16) for p in range(7)]
    AG = [(32 * p, 32 * p + 16) for p in range(8)]
    stages = [('b', BG)] * 16 + [('a', AG)] * 4
    kbs = []
    for s, (kind, G) in enumerate(stages):
        for p in range(len(G)):
            kbs.append((s, p))
    NKB = len(kbs)

    def dma_stage(s):
        kind, G = stages[s]
        n = 7 if kind == 'b' else 8
        srd = 's[16:19]' if kind == 'b' else 's[20:23]'
        ops = []
        for i in range(n):
            o = []
            if s == 16 and i == 0:
                o.append('s_lshl_b32 s48, s87, 14')
            o += [f's_add_u32 m0, s62, {(s % 4) * 32768 + i * 4096}',
                  f'buffer_load_dwordx4 v{vDW}, {srd}, s48 offen lds',
                  f's_add_u32 s48, s48, {32 * 2048}']
            ops.append(o)
        return ops

    def a_load(kb):
        r = vA + (kb % D) * 8
        return [f'buffer_load_dwordx4 v[{r}:{r + 3}], v{vL16}, s[40:43], s50 offen',
                f'buffer_load_dwordx4 v[{r + 4}:{r + 7}], v{vL16}, s[40:43], s51 offen',
                's_add_u32 s50, s50, 1024', 's_add_u32 s51, s51, 1024']

    def b_reads(kb):
        s, p = kbs[kb]
        G = stages[s][1][p]
        slot = s % 4
        par = kb % NB
        out = []
        for T in range(4):
            for a in range(2):
                r = vB + par * 16 + T * 4 + 2 * a
                base = vRB + T + (4 if slot >= 2 else 0)
                off = (slot & 1) * 32768 + G[a] * 128
                out.append(f'ds_read_b64_tr_b16 v[{r}:{r + 1}], v{base} offset:{off}')
        return out

    def emit_kb(kb, rec):
        s, p = kbs[kb]
        kind, G = stages[s]
        bar = p == len(G) - 2
        w = vm.cnt(('A', kb))
        if bar and s + 1 < len(stages):
            w = min(w, vm.cnt(('W', s + 1)))
            rec.append(('wait', w, 0))
            rec.append('s_barrier')
        else:
            rec.append(('wait', w, 8 if kb + 1 < NKB else 0))
        fill = [[] for _ in range(8)]
        if kb + 2 < NKB:
            for i, ins in enumerate(b_reads(kb + 2)):
                fill[i].append(ins)
        post = []
        if kb + D < NKB:
            post = a_load(kb + D)
        dm = []
        if bar and s + 4 < len(stages):
            dm = dma_stage(s + 4)
        accb = accB if kind == 'b' else accA
        first = (kb == 0) or (kb == 112)
        ar = vA + (kb % D) * 8
        i = 0
        for T in range(4):
            b = vB + (kb % NB) * 16 + T * 4
            for t in range(2):
                c = accb + (t * 4 + T) * 4
                cin = '0' if first else f'v[{c}:{c + 3}]'
                rec.append(f'v_mfma_f32_16x16x32_bf16 v[{c}:{c + 3}], v[{b}:{b + 3}], v[{ar + 4 * t}:{ar + 4 * t + 3}], {cin}')
                rec.extend(fill[i])
                if i < len(dm):
                    rec.extend(dm[i])
                    vm.issue(('W', s + 4))
                i += 1
        for ins in post:
            rec.append(ins)
        if post:
            vm.issue(); vm.issue(('A', kb + D))

    def flush(rec):
        for r in rec:
            if isinstance(r, tuple):
                A(f's_waitcnt vmcnt({min(r[1], 63)}) lgkmcnt({r[2]})')
            else:
                if opts.get('k3_no_mfma') and r.startswith('v_mfma'):
                    continue
                if opts.get('k3_no_a') and r.startswith('buffer_load') and 's[40:43]' in r:
                    r = r.replace('s50', '0').replace('s51', '0')
                if opts.get('k3_no_w') and r.startswith('buffer_load') and ' lds' in r:
                    r = r.replace('s48', '0')
                if opts.get('k3_no_rd') and r.startswith('ds_read'):
                    continue
                A(r)

    for s in range(4):
        for o in dma_stage(s):
            for ins in o:
                A(ins)
            vm.issue(('W', s))
        if s == 0:
            for kb in range(D // 2):
                for ins in a_load(kb):
                    A(ins)
                vm.issue(); vm.issue(('A', kb))
        if s == 1:
            for kb in range(D // 2, D):
                for ins in a_load(kb):
                    A(ins)
                vm.issue(); vm.issue(('A', kb))
    A(f's_waitcnt vmcnt({vm.cnt(("W", 0))})')
    A('s_barrier')
    for ins in b_reads(0) + b_reads(1):
        A(ins)
    rec = []
    for kb in range(NKB):
        emit_kb(kb, rec)
    flush(rec)
    A('s_waitcnt vmcnt(0)')
    t0, t1, t2, t3 = vB, vB + 1, vB + 2, vB + 3
    for t in range(2):
        g = vG + t
        omg = vB + 4 + t
        A(f'v_sub_f32 v{omg}, 1.0, v{g}')
        A(f'v_cvt_pk_bf16_f32 v{omg}, v{omg}, v{omg}')
        A(f'v_lshlrev_b32 v{omg}, 16, v{omg}')
        for T in range(4):
            cb = accB + (t * 4 + T) * 4
            ca = accA + (t * 4 + T) * 4
            for (c, sc) in ((cb, omg), (ca, g)):
                A(f'v_cvt_pk_bf16_f32 v{t0}, v{c}, v{c + 1}')
                A(f'v_cvt_pk_bf16_f32 v{t1}, v{c + 2}, v{c + 3}')
                A(f'v_lshlrev_b32 v{c}, 16, v{t0}')
                A(f'v_and_b32 v{c + 1}, 0xffff0000, v{t0}')
                A(f'v_lshlrev_b32 v{c + 2}, 16, v{t1}')
                A(f'v_and_b32 v{c + 3}, 0xffff0000, v{t1}')
                for r in range(4):
                    A(f'v_mul_f32 v{c + r}, v{sc}, v{c + r}')
                A(f'v_cvt_pk_bf16_f32 v{t0}, v{c}, v{c + 1}')
                A(f'v_cvt_pk_bf16_f32 v{t1}, v{c + 2}, v{c + 3}')
                A(f'v_lshlrev_b32 v{c}, 16, v{t0}')
                A(f'v_and_b32 v{c + 1}, 0xffff0000, v{t0}')
                A(f'v_lshlrev_b32 v{c + 2}, 16, v{t1}')
                A(f'v_and_b32 v{c + 3}, 0xffff0000, v{t1}')
            for r in range(4):
                A(f'v_add_f32 v{cb + r}, v{cb + r}, v{ca + r}')
            A(f'v_cvt_pk_bf16_f32 v{cb}, v{cb}, v{cb + 1}')
            A(f'v_cvt_pk_bf16_f32 v{cb + 1}, v{cb + 2}, v{cb + 3}')
            A(f's_mov_b32 s90, {t * 32768}')
            A(f'buffer_store_dwordx2 v[{cb}:{cb + 1}], v{vOut}, s[24:27], s90 offen offset:{T * 32}')
    A.label(f'{name}_end')
    A('s_endpgm')
    nv = (nv + 7) // 8 * 8
    return A.text(), nv, nv
```

```python
import sys
from asmlib import kd
import gen_k1b as gen_k1

HEADER = open('gated_mix__linear_kernel_hedgehog__glu_gated_geglu__prompt.s.ref').read().split('; Override launch')[0]

def build(kernels):
    out = HEADER
    for (name, text, vg, ac, grid, block, lds) in kernels:
        out += f'; @launch kernel={name} grid=({grid},1,1) block=({block},1,1) lds={lds}\n'
    out += '.amdgcn_target "amdgcn-amd-amdhsa--gfx950"\n.text\n'
    for (name, text, vg, ac, grid, block, lds) in kernels:
        out += text + '\n'
    for (name, text, vg, ac, grid, block, lds) in kernels:
        out += kd(name, vg, ac)
    return out

if __name__ == '__main__':
    which = sys.argv[1] if len(sys.argv) > 1 else 'all'
    outp = sys.argv[2] if len(sys.argv) > 2 else 'out.s'
    ks = []
    opts = dict((o, True) for o in sys.argv[3:])
    t, vg, ac = gen_k1.gen_k1('k1_kernel', opts=opts)
    ks.append(('k1_kernel', t, vg, ac, 256, 512, gen_k1.K1_LDS))
    if which == 'all':
        import gen_k23
        t, vg, ac = gen_k23.gen_k2('k2_kernel', opts=opts)
        ks.append(('k2_kernel', t, vg, ac, 256, 256, gen_k23.K2_LDS))
        t, vg, ac = gen_k23.gen_k3('k3_kernel', opts=opts)
        ks.append(('k3_kernel', t, vg, ac, 256, 256, gen_k23.K3_LDS))
    open(outp, 'w').write(build(ks))
```

```python
from asmlib import Asm
import struct

WS_A = 0
WS_Q = 0x1400000
WS_KV = 0x1800000
WS_G = 0x1C00000
WS_FLAG = 0x1D00000
WS_BYTES = 0x2000000

X_BASE = 0
W_BASE = 65536
WST = 20480
SPARE = W_BASE + 4 * WST
K1_LDS = 163840

C1 = -2.0 * 0.7978845608028654 * 1.4426950408889634
C2 = C1 * 0.044715
LOG2E = 1.4426950408889634


def f2u(f):
    return '0x%08x' % struct.unpack('<I', struct.pack('<f', f))[0]


def gen_k1(name, opts=None):
    opts = opts or {}
    MT = 4
    A = Asm()
    accum_off = 172

    def acc(nt, t):
        return (t * 10 + nt) * 4
    misc = 160
    a_A = [0, 16]
    a_B = 32
    a_BX = [60, 72]
    vXR = [misc, misc + 1]
    vBT = [[misc + 2, misc + 3], [misc + 4, misc + 5]]
    vB5 = [misc + 6, misc + 7]
    vDX = [misc + 8, misc + 9]
    vDW = [misc + 10, misc + 11]

    def Breg(jt, par):
        if jt < 7:
            return a_B + 4 * jt
        return a_BX[par] + 4 * (jt - 7)

    A.raw(f'.globl {name}\n.p2align 8\n.type {name},@function\n{name}:')
    A('s_cmp_ge_u32 s2, 256')
    A(f's_cbranch_scc1 {name}_end')
    A('s_load_dwordx4 s[4:7], s[0:1], 0')
    A('s_load_dwordx4 s[8:11], s[0:1], 16')
    A('s_load_dwordx4 s[12:15], s[0:1], 40')
    A('s_load_dwordx2 s[60:61], s[0:1], 56')
    A('s_load_dwordx2 s[62:63], s[0:1], 88')
    A('v_lshrrev_b32 v1, 6, v0')
    A('v_and_b32 v0, 63, v0')
    A('v_readfirstlane_b32 s87, v1')
    A('s_and_b32 s85, s2, 7')
    A('s_lshr_b32 s91, s2, 3')
    A('s_and_b32 s83, s91, 3')
    A('s_lshr_b32 s86, s91, 2')
    A('s_and_b32 s88, s87, 3')
    A('s_lshr_b32 s89, s87, 2')
    A('s_and_b32 s82, s83, 1')
    A('s_waitcnt lgkmcnt(0)')
    A('s_mov_b32 s16, s4\ns_mov_b32 s17, s5\ns_mov_b32 s18, 0x400000\ns_mov_b32 s19, 0x00020000')
    A(f's_mov_b32 s40, s62\ns_mov_b32 s41, s63\ns_mov_b32 s42, {WS_BYTES}\ns_mov_b32 s43, 0x00020000')
    A('s_mov_b32 s44, s8\ns_mov_b32 s45, s9\ns_mov_b32 s46, 65536\ns_mov_b32 s47, 0x00020000')
    A('s_mov_b32 s35, 0x00020000')
    A('s_or_b32 s90, s2, s87')
    A('s_cmp_lg_u32 s90, 0')
    A(f's_cbranch_scc1 {name}_nz')
    A('v_lshlrev_b32 v2, 4, v0')
    A('v_mov_b32 v4, 0\nv_mov_b32 v5, 0\nv_mov_b32 v6, 0\nv_mov_b32 v7, 0')
    A(f's_mov_b32 s90, {WS_FLAG}')
    A('buffer_store_dwordx4 v[4:7], v2, s[40:43], s90 offen')
    A('s_waitcnt vmcnt(0)')
    A.label(f'{name}_nz')
    A('v_and_b32 v2, 15, v0')
    A('v_lshrrev_b32 v3, 4, v0')
    A('v_lshrrev_b32 v5, 3, v0')
    A('v_and_b32 v6, 7, v0')
    A('v_xor_b32 v6, v6, v3')
    A('v_lshlrev_b32 v7, 4, v6')
    A(f'v_lshl_add_u32 v{vDX[0]}, v5, 11, v7')
    A('v_xor_b32 v6, 4, v6')
    A('v_lshlrev_b32 v7, 4, v6')
    A(f'v_lshl_add_u32 v{vDX[1]}, v5, 11, v7')
    A('s_lshl_b32 s90, s86, 19')
    A('s_lshl_b32 s91, s87, 16')
    A('s_add_u32 s48, s90, s91')
    for q in range(1, 4):
        A(f's_add_u32 s{48 + q}, s48, {q * 16384}')
    A('s_lshl_b32 s58, s87, 12')
    A('v_lshrrev_b32 v5, 1, v2')
    A('v_xor_b32 v5, v5, v3')
    A('s_lshl_b32 s90, s88, 13')
    A('v_lshlrev_b32 v6, 7, v2')
    A('v_add_u32 v6, s90, v6')
    A(f'v_lshl_add_u32 v{vXR[0]}, v5, 4, v6')
    A('v_xor_b32 v5, 4, v5')
    A(f'v_lshl_add_u32 v{vXR[1]}, v5, 4, v6')
    A('v_lshrrev_b32 v5, 5, v0')
    A('v_and_b32 v6, 1, v3')
    A('v_lshrrev_b32 v7, 2, v0')
    A('v_and_b32 v7, 3, v7')
    A('v_lshl_add_u32 v7, v6, 2, v7')
    A('v_lshrrev_b32 v9, 1, v7')
    A('v_lshl_add_u32 v7, v5, 4, v7')
    A('v_and_b32 v8, 3, v0')
    A('v_lshlrev_b32 v8, 3, v8')
    A('s_lshl_b32 s90, s89, 1')
    for e in range(2):
        A(f's_add_u32 s91, s90, {e}')
        A('v_xor_b32 v10, s91, v9')
        A('v_lshlrev_b32 v10, 5, v10')
        A('v_lshl_add_u32 v10, v7, 7, v10')
        A(f'v_add3_u32 v{vBT[0][e]}, v10, v8, 0')
        A(f'v_add_u32 v{vBT[0][e]}, {W_BASE}, v{vBT[0][e]}')
        A(f'v_add_u32 v{vBT[1][e]}, {2 * WST}, v{vBT[0][e]}')
    A('v_xor_b32 v10, s89, v6')
    A('v_lshlrev_b32 v10, 5, v10')
    A('v_lshl_add_u32 v10, v7, 6, v10')
    A(f'v_add3_u32 v{vB5[0]}, v10, v8, 0')
    A(f'v_add_u32 v{vB5[0]}, {W_BASE + 4 * 4096}, v{vB5[0]}')
    A(f'v_add_u32 v{vB5[1]}, {2 * WST}, v{vB5[0]}')
    A('v_lshrrev_b32 v5, 3, v0')
    A('v_lshrrev_b32 v6, 2, v5')
    A('v_and_b32 v7, 3, v5')
    A('v_lshl_add_u32 v6, v6, 3, v7')
    A('v_and_b32 v7, 6, v5')
    A('v_and_b32 v8, 7, v0')
    A('v_xor_b32 v7, v7, v8')
    A('v_lshlrev_b32 v7, 4, v7')
    A('v_lshrrev_b32 v9, 2, v0')
    A('v_and_b32 v10, 3, v9')
    A('v_and_b32 v11, 4, v9')
    A('v_lshl_add_u32 v10, v11, 1, v10')
    A('v_and_b32 v12, 8, v9')
    A('v_lshrrev_b32 v12, 1, v12')
    A('v_add_u32 v10, v10, v12')
    A('v_lshrrev_b32 v11, 1, v11')
    A('v_and_b32 v12, 3, v0')
    A('v_xor_b32 v11, v11, v12')
    A('v_lshlrev_b32 v11, 4, v11')
    A('v_mul_u32_u24 v10, 7168, v10')
    A(f'v_add_u32 v{vDW[1]}, v10, v11')
    A('s_sub_u32 s90, s87, 1')
    A('s_lshl_b32 s90, s90, 8')
    A('s_add_u32 s90, s90, s2')
    A(f's_mov_b32 s32, s6\ns_mov_b32 s33, s7\ns_mov_b32 s34, {1024 * 6144}\ns_mov_b32 s59, {64 * 6144}')
    A('s_cmp_ge_u32 s90, 384')
    A('s_cselect_b32 s32, s12, s32')
    A('s_cselect_b32 s33, s13, s33')
    A(f's_cselect_b32 s34, {1024 * 7168}, s34')
    A(f's_cselect_b32 s59, {64 * 7168}, s59')
    A('s_cselect_b32 s91, 384, 0')
    A('s_cmp_ge_u32 s90, 832')
    A('s_cselect_b32 s32, s14, s32')
    A('s_cselect_b32 s33, s15, s33')
    A('s_cselect_b32 s91, 832, s91')
    A('s_cmp_ge_u32 s87, 6')
    A('s_cselect_b32 s32, s60, s32')
    A('s_cselect_b32 s33, s61, s33')
    A(f's_cselect_b32 s59, {512 * 1024}, s59')
    A('s_cselect_b32 s91, 1280, s91')
    A('s_cselect_b32 s93, 0, 2')
    A('s_sub_u32 s90, s90, s91')
    A('s_lshr_b32 s91, s90, 4')
    A('s_lshl_b32 s91, s91, 14')
    A('s_and_b32 s90, s90, 15')
    A('s_lshl_b32 s90, s90, 7')
    A('s_add_u32 s76, s90, s91')
    A('s_cmp_eq_u32 s87, 0')
    A('s_cselect_b32 s32, s4, s32')
    A('s_cselect_b32 s33, s5, s33')
    A('s_cselect_b32 s34, 0x400000, s34')
    A('s_cselect_b32 s59, 128, s59')
    A('s_lshl_b32 s90, s2, 14')
    A('s_cmp_eq_u32 s87, 0')
    A('s_cselect_b32 s76, s90, s76')
    A('s_mul_i32 s93, s93, s59')
    A('s_add_u32 s76, s76, s93')
    A('s_and_b32 s81, s87, 3')
    A('s_lshr_b32 s90, s81, 1')
    A('s_lshl_b32 s90, s90, 4')
    A('s_and_b32 s91, s81, 1')
    A('s_lshl_b32 s91, s91, 2')
    A('s_add_u32 s80, s90, s91')
    A('s_mul_i32 s79, s85, 896')
    A('s_cmp_ge_u32 s83, 2')
    A(f's_cbranch_scc1 {name}_typeA')

    def set_srd(slot, lo, hi, size):
        b = 20 + 4 * slot
        A(f's_mov_b32 s{b}, {lo}\ns_mov_b32 s{b + 1}, {hi}\ns_mov_b32 s{b + 2}, {size}\ns_mov_b32 s{b + 3}, 0x00020000')

    def set_m0(slot, sreg):
        A(f's_mov_b32 s{64 + 4 * slot}, {sreg}')
        for st in range(1, 4):
            A(f's_add_u32 s{64 + 4 * slot + st}, s{64 + 4 * slot + st - 1}, {WST}')

    def dma_x(slot):
        ops = []
        for q in range(4):
            ops.append([f's_add_u32 m0, s58, {X_BASE + slot * 32768 + q * 1024}',
                        f'buffer_load_dwordx4 v{vDX[q & 1]}, s[16:19], s{48 + q} offen lds',
                        f's_add_u32 s{48 + q}, s{48 + q}, 128'])
        return ops

    def dma_w(typ, hi, stage):
        ops = []
        for q in range(2 if hi else 3):
            srd = 20 + 4 * q
            vo = vDW[1] if (typ == 'B' and q == 2) else vDW[0]
            ops.append([f's_mov_b32 m0, s{64 + 4 * q + stage}',
                        f'buffer_load_dwordx4 v{vo}, s[{srd}:{srd + 3}], s{52 + q} offen lds',
                        f's_add_u32 s{52 + q}, s{52 + q}, s{55 + q}'])
        return ops

    def dma_pf():
        return [[f's_mov_b32 m0, {SPARE + 4096}',
                 f'buffer_load_dwordx4 v{vDX[0]}, s[32:35], s76 offen lds',
                 's_add_u32 s76, s76, s59']]

    def dma_pf_wo():
        return [['s_lshl_b32 s90, s87, 8',
                 's_add_u32 s90, s90, s2',
                 's_lshr_b32 s91, s90, 4',
                 's_lshl_b32 s91, s91, 14',
                 's_and_b32 s90, s90, 15',
                 's_lshl_b32 s90, s90, 7',
                 's_add_u32 s90, s90, s91',
                 f's_mov_b32 s32, s10', 's_mov_b32 s33, s11', f's_mov_b32 s34, {1024 * 2048}',
                 f's_mov_b32 m0, {SPARE + 4096}',
                 f'buffer_load_dwordx4 v{vDX[0]}, s[32:35], s90 offen lds']]

    def ntiles(typ):
        if typ == 'A':
            return [('q', 0, 0), ('q', 0, 1), ('k', 1, 0), ('k', 1, 1), ('v', 2, 0), ('v', 2, 1),
                    ('G', 3, 0), ('G', 3, 1), ('U', 4, 0), ('U', 4, 1)]
        return [('G', 0, 0), ('G', 0, 1), ('G', 1, 0), ('G', 1, 1), ('G', 'h', 0),
                ('U', 2, 0), ('U', 2, 1), ('U', 3, 0), ('U', 3, 1), ('U', 'h', 1)]

    def b_reads(typ, jt, stage, par):
        kind, ch, e = ntiles(typ)[jt]
        reg = Breg(jt, par)
        out = []
        for a in range(2):
            if ch == 'h':
                base = vB5[stage >> 1]
                off = (stage & 1) * WST + e * 2048 + a * 512
            else:
                base = vBT[stage >> 1][e]
                off = (stage & 1) * WST + ch * 4096 + a * 1024
            out.append(f'ds_read_b64_tr_b16 a[{reg + 2 * a}:{reg + 2 * a + 1}], v{base} offset:{off}')
        return out

    def a_reads(kb, par):
        slot, half = (kb >> 1) & 1, kb & 1
        return [f'ds_read_b128 a[{a_A[par] + 4 * t}:{a_A[par] + 4 * t + 3}], v{vXR[half]} offset:{X_BASE + slot * 32768 + t * 2048}'
                for t in range(MT)]

    def step(typ, hi, s, rd, dma, vmwait, barrier=True):
        par = s & 1
        nm = 10 * MT
        fill = [[] for _ in range(nm)]
        if rd and not opts.get('no_reads'):
            rstage = (s + 1) % 4
            early = a_reads(s + 1, par ^ 1)
            for jt in range(7, 10):
                early += b_reads(typ, jt, rstage, par ^ 1)
            for q, ins in enumerate(early):
                fill[q].append(ins)
            for jt in range(7):
                r2 = b_reads(typ, jt, rstage, par ^ 1)
                fill[MT * jt + MT - 1].append(r2[0])
                fill[MT * jt + MT].append(r2[1])
        if dma == 'wo':
            if not opts.get('no_pf'):
                fill[MT + 6] += dma_pf_wo()[0]
        elif dma and not opts.get('no_dma'):
            ops = []
            if s & 1:
                ops += dma_x((s >> 1) & 1)
            ops += dma_w(typ, hi, s)
            if s & 1 and not opts.get('no_pf'):
                ops += dma_pf()
            start = MT + 6
            stride = (nm - start - 2) // len(ops)
            for q, o in enumerate(ops):
                fill[start + q * stride] += o
        tl = ntiles(typ)
        idx = 0
        for jt in range(10):
            b = Breg(jt, par)
            for t in range(MT):
                a = a_A[par] + 4 * t
                c = acc(jt, t)
                c = f'v[{c}:{c + 3}]'
                if opts.get('no_mfma'):
                    pass
                elif tl[jt][0] == 'v':
                    A(f'v_mfma_f32_16x16x32_bf16 {c}, a[{a}:{a + 3}], a[{b}:{b + 3}], {c}')
                else:
                    A(f'v_mfma_f32_16x16x32_bf16 {c}, a[{b}:{b + 3}], a[{a}:{a + 3}], {c}')
                for ins in fill[idx]:
                    A(ins)
                idx += 1
        if barrier:
            if isinstance(vmwait, tuple):
                lab = f'{name}_{typ}{hi}_w{s}'
                A(f's_waitcnt vmcnt({vmwait[0]}) lgkmcnt(0)')
                A('s_cmp_eq_u32 s84, 7')
                A(f's_cbranch_scc1 {lab}')
                A(f's_waitcnt vmcnt({vmwait[1]})')
                A.label(lab)
            elif vmwait is not None:
                A(f's_waitcnt vmcnt({vmwait}) lgkmcnt(0)')
            else:
                A('s_waitcnt lgkmcnt(0)')
            A('s_barrier')

    def body(typ, hi):
        tag = f'{name}_{typ}{hi}'
        nw = 2 if hi else 3
        npf = 0 if opts.get('no_pf') else 1
        NB0 = 4 * npf
        seq = dma_x(0) + dma_w(typ, hi, 0) + dma_w(typ, hi, 1) + dma_x(1) + dma_w(typ, hi, 2) + dma_w(typ, hi, 3)
        for i in range(NB0):
            seq += dma_pf()
        for o in seq:
            for ins in o:
                A(ins)
        ntot = 8 + 4 * nw + NB0
        if typ == 'A':
            A(f's_waitcnt vmcnt({ntot})')
            for i in range(8):
                A(f'v_lshl_or_b32 v{100 + i}, v{109 + 2 * i}, 16, v{108 + 2 * i}')
            A('v_lshlrev_b32 v5, 4, v0')
            A('s_lshl_b32 s90, s89, 11')
            A('v_add_u32 v5, s90, v5')
            A(f'v_add_u32 v5, {SPARE}, v5')
            A('ds_write_b128 v5, v[100:103]')
            A('ds_write_b128 v5, v[104:107] offset:1024')
            A('s_waitcnt lgkmcnt(0)')
        for i in range(160):
            A(f'v_mov_b32 v{i}, 0')
        A(f's_waitcnt vmcnt({ntot - 4 - nw})')
        A('s_barrier')
        for ins in a_reads(0, 0):
            A(ins)
        for jt in range(10):
            for ins in b_reads(typ, jt, 0, 0):
                A(ins)
        A(f's_waitcnt vmcnt({4 + 2 * nw + NB0}) lgkmcnt(0)')
        A('s_barrier')
        A('s_mov_b32 s84, 7')
        A.flush_hazards()
        A.label(f'{tag}_loop')
        step(typ, hi, 0, True, True, (2 * nw + NB0, 2 * nw + npf))
        step(typ, hi, 1, True, True, (2 * nw + 4 + npf + NB0, 2 * nw + 4 + 2 * npf))
        step(typ, hi, 2, True, True, 2 * nw + npf)
        step(typ, hi, 3, True, True, 2 * nw + 4 + 2 * npf)
        A('s_sub_u32 s84, s84, 1')
        A('s_cmp_lg_u32 s84, 0')
        A(f's_cbranch_scc1 {tag}_loop')
        step(typ, hi, 0, True, False, nw + npf)
        step(typ, hi, 1, True, False, npf)
        step(typ, hi, 2, True, 'wo', None)
        step(typ, hi, 3, False, False, None, barrier=False)

    A('s_mul_i32 s90, s82, 384')
    A('s_add_u32 s90, s90, s79')
    A('s_cmp_ge_u32 s87, 4')
    A('s_cselect_b32 s91, 0, 128')
    A('s_add_u32 s90, s90, s91')
    A('s_mul_i32 s91, s80, 7168')
    A('s_add_u32 s52, s90, s91')
    A('s_mov_b32 s53, s52')
    set_srd(0, 's12', 's13', 1024 * 7168)
    set_srd(1, 's14', 's15', 1024 * 7168)
    A('s_cmp_ge_u32 s87, 4')
    A('s_cselect_b32 s90, 0, 4096')
    A('s_lshl_b32 s91, s81, 10')
    A('s_add_u32 s90, s90, s91')
    A(f's_add_u32 s90, s90, {W_BASE}')
    set_m0(0, 's90')
    A('s_add_u32 s90, s90, 8192')
    set_m0(1, 's90')
    A('s_and_b32 s90, s87, 2')
    A('s_cmp_eq_u32 s90, 0')
    A('s_cselect_b32 s28, s12, s14')
    A('s_cselect_b32 s29, s13, s15')
    A(f's_mov_b32 s30, {1024 * 7168}\ns_mov_b32 s31, 0x00020000')
    A('s_and_b32 s91, s87, 1')
    A(f's_mul_i32 s91, s91, {16 * 7168}')
    A('s_lshl_b32 s92, s82, 6')
    A('s_add_u32 s91, s91, s92')
    A('s_add_u32 s91, s91, s79')
    A('s_add_u32 s54, s91, 256')
    A('s_lshl_b32 s90, s81, 10')
    A(f's_add_u32 s90, s90, {W_BASE + 16384}')
    set_m0(2, 's90')
    for q in range(3):
        A(f's_mov_b32 s{55 + q}, {32 * 7168}')
    A('v_mul_u32_u24 v6, 7168, v6')
    A(f'v_add_u32 v{vDW[0]}, v6, v7')
    A('s_cmp_ge_u32 s87, 4')
    A(f's_cbranch_scc1 {name}_B1')
    body('B', 0)
    A(f's_branch {name}_epiB')
    A.label(f'{name}_B1')
    body('B', 1)
    A.label(f'{name}_epiB')
    if not opts.get('no_epi'):
        epilogue_B(A, name, acc, misc, opts)
    A(f's_branch {name}_end')

    A.label(f'{name}_typeA')
    A('s_lshl_b32 s78, s85, 1')
    A('s_add_u32 s78, s78, s82')
    A('v_lshlrev_b32 v4, 8, v3')
    A('v_lshl_add_u32 v4, v2, 1, v4')
    A('s_lshl_b32 s77, s78, 1')
    A('s_add_u32 s77, s77, s89')
    A('s_lshl_b32 s90, s77, 11')
    for ft in range(2):
        for jj in range(8):
            d = 16 * (jj >> 2) + (jj & 3)
            A(f'buffer_load_ushort v{108 + ft * 8 + jj}, v4, s[44:47], s90 offen offset:{d * 64 + ft * 32}')
    A('s_cmp_ge_u32 s87, 4')
    A(f's_cbranch_scc1 {name}_A1')
    A('s_mul_i32 s91, s80, 6144')
    A('s_lshl_b32 s90, s78, 7')
    A('s_add_u32 s52, s90, s91')
    A('s_add_u32 s53, s52, 2048')
    A('s_add_u32 s54, s52, 4096')
    A('s_lshl_b32 s90, s81, 10')
    A(f's_add_u32 s90, s90, {W_BASE}')
    for q in range(3):
        set_srd(q, 's6', 's7', 1024 * 6144)
        A(f's_mov_b32 s{55 + q}, {32 * 6144}')
        set_m0(q, 's90')
        A('s_add_u32 s90, s90, 4096')
    A('v_mul_u32_u24 v6, 6144, v6')
    A(f'v_add_u32 v{vDW[0]}, v6, v7')
    body('A', 0)
    A(f's_branch {name}_epiA')
    A.label(f'{name}_A1')
    A('s_mul_i32 s91, s80, 7168')
    A('s_lshl_b32 s90, s82, 7')
    A('s_add_u32 s90, s90, s79')
    A('s_add_u32 s90, s90, 640')
    A('s_add_u32 s52, s90, s91')
    A('s_mov_b32 s53, s52')
    set_srd(0, 's12', 's13', 1024 * 7168)
    set_srd(1, 's14', 's15', 1024 * 7168)
    A('s_lshl_b32 s90, s81, 10')
    A(f's_add_u32 s90, s90, {W_BASE + 3 * 4096}')
    for q in range(2):
        A(f's_mov_b32 s{55 + q}, {32 * 7168}')
        set_m0(q, 's90')
        A('s_add_u32 s90, s90, 4096')
    A('v_mul_u32_u24 v6, 7168, v6')
    A(f'v_add_u32 v{vDW[0]}, v6, v7')
    body('A', 1)
    A.label(f'{name}_epiA')
    if not opts.get('no_epi'):
        epilogue_A(A, name, acc, misc, opts)
    A.label(f'{name}_end')
    A('s_endpgm')
    return A.text(), 256, accum_off


def epi_common(A, misc):
    vL16 = misc
    vC1 = misc + 2
    A('v_mbcnt_lo_u32_b32 v%d, -1, 0' % vL16)
    A('v_mbcnt_hi_u32_b32 v%d, -1, v%d' % (vL16, vL16))
    A(f'v_lshlrev_b32 v{vL16}, 4, v{vL16}')
    A(f'v_mov_b32 v{vC1}, {f2u(C1)}')
    A(f'v_mov_b32 v{vC1 + 1}, {f2u(C1)}')
    A(f's_mov_b32 s98, {f2u(C2)}')
    A(f's_mov_b32 s99, {f2u(C2)}')
    A('s_lshl_b32 s90, s86, 4')
    A('s_lshl_b32 s91, s88, 2')
    A('s_add_u32 s90, s90, s91')
    A('s_mul_i32 s91, s90, 147456')
    A('s_mul_i32 s92, s85, 14')


def gelu_tile(A, misc, g, u, out2, tmp):
    vC1 = misc + 2
    for h in (0, 2):
        A(f'v_pk_mul_f32 v[{tmp + h}:{tmp + h + 1}], v[{g + h}:{g + h + 1}], v[{g + h}:{g + h + 1}]')
    for h in (0, 2):
        A(f'v_pk_fma_f32 v[{tmp + h}:{tmp + h + 1}], v[{tmp + h}:{tmp + h + 1}], s[98:99], v[{vC1}:{vC1 + 1}]')
    for h in (0, 2):
        A(f'v_pk_mul_f32 v[{tmp + h}:{tmp + h + 1}], v[{tmp + h}:{tmp + h + 1}], v[{g + h}:{g + h + 1}]')
    for r in range(4):
        A(f'v_exp_f32 v{tmp + r}, v{tmp + r}')
    for h in (0, 2):
        A(f'v_pk_mul_f32 v[{g + h}:{g + h + 1}], v[{g + h}:{g + h + 1}], v[{u + h}:{u + h + 1}]')
    for h in (0, 2):
        A(f'v_pk_add_f32 v[{tmp + h}:{tmp + h + 1}], v[{tmp + h}:{tmp + h + 1}], 1.0 op_sel_hi:[1,0]')
    for r in range(4):
        A(f'v_rcp_f32 v{tmp + r}, v{tmp + r}')
    for h in (0, 2):
        A(f'v_pk_mul_f32 v[{g + h}:{g + h + 1}], v[{g + h}:{g + h + 1}], v[{tmp + h}:{tmp + h + 1}]')
    A(f'v_cvt_pk_bf16_f32 v{out2[0]}, v{g}, v{g + 1}')
    A(f'v_cvt_pk_bf16_f32 v{out2[1]}, v{g + 2}, v{g + 3}')


def epilogue_B(A, name, acc, misc, opts):
    vL16 = misc
    T0, T1 = misc + 4, misc + 8
    ST = opts.get('st_mod', '')
    epi_common(A, misc)
    A('s_mul_i32 s93, s82, 6')
    A('s_add_u32 s93, s93, s92')
    A('s_add_u32 s93, s93, s89')
    A('s_lshl_b32 s93, s93, 10')
    A('s_add_u32 s94, s93, s91')
    A('s_add_u32 s93, s92, s82')
    A('s_add_u32 s93, s93, 4')
    A('s_lshl_b32 s93, s93, 10')
    A('s_add_u32 s95, s93, s91')
    A('s_lshl_b32 s93, s89, 3')
    A('s_add_u32 s95, s95, s93')
    for t in range(4):
        for p in range(2):
            g0, g1, u0, u1 = acc(2 * p, t), acc(2 * p + 1, t), acc(5 + 2 * p, t), acc(6 + 2 * p, t)
            gelu_tile(A, misc, g0, u0, [u0, u0 + 1], T0)
            gelu_tile(A, misc, g1, u1, [u0 + 2, u0 + 3], T1)
            A(f'buffer_store_dwordx4 v[{u0}:{u0 + 3}], v{vL16}, s[40:43], s94 offen offset:{p * 2048}{ST}')
        g0, u0 = acc(4, t), acc(9, t)
        gelu_tile(A, misc, g0, u0, [u0, u0 + 1], T0)
        A(f'buffer_store_dwordx2 v[{u0}:{u0 + 1}], v{vL16}, s[40:43], s95 offen{ST}')
        if t < 3:
            A('s_add_u32 s94, s94, 147456')
            A('s_add_u32 s95, s95, 147456')


def epilogue_A(A, name, acc, misc, opts):
    vL16 = misc
    T0, T1 = misc + 4, misc + 8
    ST = opts.get('st_mod', '')
    epi_common(A, misc)
    aW = 76
    aKV = 0
    A('s_lshl_b32 s97, s89, 11')
    A(f's_add_u32 s97, s97, {SPARE}')
    A(f'v_add_u32 v{T0}, s97, v{vL16}')
    A(f'ds_read_b128 a[{aW}:{aW + 3}], v{T0}')
    A(f'ds_read_b128 a[{aW + 4}:{aW + 7}], v{T0} offset:1024')
    A('s_lshl_b32 s93, s82, 1')
    A('s_add_u32 s93, s93, s92')
    A('s_add_u32 s93, s93, s89')
    A('s_add_u32 s93, s93, 10')
    A('s_lshl_b32 s93, s93, 10')
    A('s_add_u32 s94, s93, s91')
    A('s_lshl_b32 s96, s77, 7')
    A('s_add_u32 s96, s96, s90')
    A('s_lshl_b32 s96, s96, 10')
    A(f's_add_u32 s96, s96, {WS_Q}')

    def pack(d, a, b):
        A(f'v_cvt_pk_bf16_f32 v{d}, v{a}, v{a + 1}')
        A(f'v_cvt_pk_bf16_f32 v{d + 1}, v{a + 2}, v{a + 3}')
        A(f'v_cvt_pk_bf16_f32 v{d + 2}, v{b}, v{b + 1}')
        A(f'v_cvt_pk_bf16_f32 v{d + 3}, v{b + 2}, v{b + 3}')
    for t in range(4):
        k0, k1 = acc(2, t), acc(3, t)
        pack(k0, k0, k1)
    for t in range(4):
        q0, q1 = acc(0, t), acc(1, t)
        pack(q0, q0, q1)
        A(f'buffer_store_dwordx4 v[{q0}:{q0 + 3}], v{vL16}, s[40:43], s96 offen offset:{t * 1024}{ST}')
    A('s_waitcnt lgkmcnt(0)')
    for t in range(4):
        k0 = acc(2, t)
        p0, p1 = acc(1, t), acc(3, t)
        A(f'v_mfma_f32_16x16x32_bf16 v[{p0}:{p0 + 3}], a[{aW}:{aW + 3}], v[{k0}:{k0 + 3}], 0')
        A(f'v_mfma_f32_16x16x32_bf16 v[{p1}:{p1 + 3}], a[{aW + 4}:{aW + 7}], v[{k0}:{k0 + 3}], 0')
    for tp in (0, 2):
        for dt in range(2):
            a0, a1 = acc(4 + dt, tp), acc(4 + dt, tp + 1)
            pack(a0, a0, a1)
    for t in range(4):
        g0, g1, u0, u1 = acc(6, t), acc(7, t), acc(8, t), acc(9, t)
        gelu_tile(A, misc, g0, u0, [u0, u0 + 1], T0)
        gelu_tile(A, misc, g1, u1, [u0 + 2, u0 + 3], T1)
        A(f'buffer_store_dwordx4 v[{u0}:{u0 + 3}], v{vL16}, s[40:43], s94 offen{ST}')
        if t < 3:
            A('s_add_u32 s94, s94, 147456')
    ones = acc(4, 1)
    for r in range(4):
        A(f'v_mov_b32 v{ones + r}, 0x3f803f80')
    idr = acc(5, 1)
    assert acc(6, 1) == idr + 4
    A(f'v_lshrrev_b32 v{T0}, 4, v{vL16}')
    A(f'v_and_b32 v{T0 + 1}, 15, v{T0}')
    A(f'v_lshrrev_b32 v{T0 + 2}, 4, v{T0}')
    A(f'v_lshrrev_b32 v{T0 + 3}, 2, v{T0 + 1}')
    A(f'v_and_b32 v{T1}, 1, v{T0 + 1}')
    A(f'v_lshlrev_b32 v{T1}, 4, v{T1}')
    A(f'v_mov_b32 v{T1 + 1}, 0x3f80')
    A(f'v_lshlrev_b32 v{T1 + 1}, v{T1}, v{T1 + 1}')
    A(f'v_cmp_eq_u32 vcc, v{T0 + 2}, v{T0 + 3}')
    A(f'v_cndmask_b32 v{T1 + 1}, 0, v{T1 + 1}, vcc')
    A(f'v_and_b32 v{T1 + 2}, 2, v{T0 + 1}')
    A(f'v_cmp_eq_u32 vcc, 0, v{T1 + 2}')
    A(f'v_cndmask_b32 v{idr + 2}, 0, v{T1 + 1}, vcc')
    A(f'v_cndmask_b32 v{idr + 3}, v{T1 + 1}, 0, vcc')
    for r in (0, 1, 4, 5):
        A(f'v_mov_b32 v{idr + r}, 0')
    I = [idr + 2, idr]
    A(f's_mov_b32 s96, {f2u(LOG2E)}')
    A(f's_mov_b32 s97, {f2u(LOG2E)}')
    phi = [acc(0, 0), acc(0, 1), acc(0, 2), acc(0, 3)]
    EP = [acc(6, 0), acc(6, 2)]
    EN = [acc(6, 3), acc(4, 3)]
    TR = [[acc(9, 0), acc(9, 1), acc(9, 2), acc(9, 3)], [acc(2, 0), acc(2, 1), acc(2, 2), acc(2, 3)]]
    SC = [T0, T1]
    for t in range(4):
        e = t & 1
        p0, p1 = acc(1, t), acc(3, t)
        P = [p0 + r for r in range(4)] + [p1 + r for r in range(4)]
        ep, en = EP[e], EN[e]
        mx, mn, tm, tn = SC[e], SC[e] + 1, SC[e] + 2, SC[e] + 3
        if opts.get('round_p'):
            for i in range(0, 8, 2):
                A(f'v_cvt_pk_bf16_f32 v{ep + i}, v{P[i]}, v{P[i + 1]}')
            for i in range(0, 8, 2):
                A(f'v_lshlrev_b32 v{P[i]}, 16, v{ep + i}')
                A(f'v_and_b32 v{P[i + 1]}, 0xffff0000, v{ep + i}')
        A(f'v_max3_f32 v{mx}, v{P[0]}, v{P[1]}, v{P[2]}')
        A(f'v_min3_f32 v{mn}, v{P[0]}, v{P[1]}, v{P[2]}')
        A(f'v_max3_f32 v{mx}, v{mx}, v{P[3]}, v{P[4]}')
        A(f'v_min3_f32 v{mn}, v{mn}, v{P[3]}, v{P[4]}')
        A(f'v_max3_f32 v{mx}, v{mx}, v{P[5]}, v{P[6]}')
        A(f'v_min3_f32 v{mn}, v{mn}, v{P[5]}, v{P[6]}')
        A(f'v_max_f32 v{mx}, v{mx}, v{P[7]}')
        A(f'v_min_f32 v{mn}, v{mn}, v{P[7]}')
        for sw in ('v_permlane16_swap_b32', 'v_permlane32_swap_b32'):
            A(f'v_mov_b32 v{tm}, v{mx}')
            A(f'v_mov_b32 v{tn}, v{mn}')
            A(f'{sw} v{mx}, v{tm}')
            A(f'{sw} v{mn}, v{tn}')
            A(f'v_max_f32 v{mx}, v{mx}, v{tm}')
            A(f'v_min_f32 v{mn}, v{mn}, v{tn}')
        A(f'v_mul_f32 v{tm}, s96, v{mn}')
        A(f'v_mul_f32 v{tn}, s96, v{mn}')
        A(f'v_mul_f32 v{mn}, s96, v{mx}')
        A(f'v_mul_f32 v{mx}, s96, v{mx}')
        for h in range(0, 8, 2):
            src = P[h]
            A(f'v_pk_fma_f32 v[{ep + h}:{ep + h + 1}], v[{src}:{src + 1}], s[96:97], v[{mx}:{mn}] neg_lo:[0,0,1] neg_hi:[0,0,1]')
            A(f'v_pk_fma_f32 v[{en + h}:{en + h + 1}], v[{src}:{src + 1}], s[96:97], v[{tm}:{tn}] neg_lo:[1,0,0] neg_hi:[1,0,0]')
        for i in range(8):
            A(f'v_exp_f32 v{ep + i}, v{ep + i}')
            A(f'v_exp_f32 v{en + i}, v{en + i}')
        A(f'v_pk_add_f32 v[{p0}:{p0 + 1}], v[{ep}:{ep + 1}], v[{ep + 2}:{ep + 3}]')
        A(f'v_pk_add_f32 v[{p0 + 2}:{p0 + 3}], v[{ep + 4}:{ep + 5}], v[{ep + 6}:{ep + 7}]')
        A(f'v_pk_add_f32 v[{p1}:{p1 + 1}], v[{en}:{en + 1}], v[{en + 2}:{en + 3}]')
        A(f'v_pk_add_f32 v[{p1 + 2}:{p1 + 3}], v[{en + 4}:{en + 5}], v[{en + 6}:{en + 7}]')
        A(f'v_pk_add_f32 v[{p0}:{p0 + 1}], v[{p0}:{p0 + 1}], v[{p0 + 2}:{p0 + 3}]')
        A(f'v_pk_add_f32 v[{p1}:{p1 + 1}], v[{p1}:{p1 + 1}], v[{p1 + 2}:{p1 + 3}]')
        A(f'v_add_f32 v{mx}, v{p0}, v{p0 + 1}')
        A(f'v_add_f32 v{mn}, v{p1}, v{p1 + 1}')
        for sw in ('v_permlane16_swap_b32', 'v_permlane32_swap_b32'):
            A(f'v_mov_b32 v{tm}, v{mx}')
            A(f'v_mov_b32 v{tn}, v{mn}')
            A(f'{sw} v{mx}, v{tm}')
            A(f'{sw} v{mn}, v{tn}')
            A(f'v_add_f32 v{mx}, v{mx}, v{tm}')
            A(f'v_add_f32 v{mn}, v{mn}, v{tn}')
        A(f'v_rcp_f32 v{tm}, v{mn}')
        A(f'v_rcp_f32 v{tn}, v{mn}')
        A(f'v_rcp_f32 v{mn}, v{mx}')
        A(f'v_rcp_f32 v{mx}, v{mx}')
        for h in range(0, 8, 2):
            A(f'v_pk_mul_f32 v[{ep + h}:{ep + h + 1}], v[{ep + h}:{ep + h + 1}], v[{mx}:{mn}]')
            A(f'v_pk_mul_f32 v[{en + h}:{en + h + 1}], v[{en + h}:{en + h + 1}], v[{tm}:{tn}]')
        for i in range(4):
            A(f'v_cvt_pk_bf16_f32 v{p0 + i}, v{ep + 2 * i}, v{ep + 2 * i + 1}')
            A(f'v_cvt_pk_bf16_f32 v{p1 + i}, v{en + 2 * i}, v{en + 2 * i + 1}')
        tr = TR[e]
        for F in range(4):
            src = p0 if F < 2 else p1
            ih = I[F & 1]
            A(f'v_mfma_f32_16x16x32_bf16 v[{tr[F]}:{tr[F] + 3}], v[{src}:{src + 3}], v[{ih}:{ih + 3}], 0')
        if t & 1:
            for tt in (t - 1, t):
                tr = TR[tt & 1]
                h = (tt & 1) * 2
                for F in range(4):
                    A(f'v_cvt_pk_bf16_f32 v{phi[F] + h}, v{tr[F]}, v{tr[F] + 1}')
                    A(f'v_cvt_pk_bf16_f32 v{phi[F] + h + 1}, v{tr[F] + 2}, v{tr[F] + 3}')
            tp = t - 1
            for F in range(4):
                for dt in range(3):
                    b = acc(4 + dt, tp) if dt < 2 else ones
                    c = aKV + (F * 3 + dt) * 4
                    cin = '0' if tp == 0 else f'a[{c}:{c + 3}]'
                    A(f'v_mfma_f32_16x16x32_bf16 a[{c}:{c + 3}], v[{phi[F]}:{phi[F] + 3}], v[{b}:{b + 3}], {cin}')
    A('s_mul_i32 s97, s87, 12288')
    A(f'v_add_u32 v{T0}, s97, v{vL16}')
    for i in range(12):
        A(f'ds_write_b128 v{T0}, a[{aKV + 4 * i}:{aKV + 4 * i + 3}] offset:{i * 1024}')
    A('s_waitcnt lgkmcnt(0)')
    A('s_barrier')
    A('s_lshl_b32 s96, s77, 3')
    A('s_add_u32 s96, s96, s86')
    A('s_mul_i32 s96, s96, 12288')
    A(f's_add_u32 s96, s96, {WS_KV}')
    A('s_mul_i32 s97, s88, 3072')
    A('s_add_u32 s96, s96, s97')
    A('s_mul_i32 s93, s89, 49152')
    A('s_add_u32 s97, s97, s93')
    A(f'v_add_u32 v{T0}, s97, v{vL16}')
    for e in range(3):
        for p in range(4):
            b = 16 * e + 4 * p
            A(f'ds_read_b128 v[{b}:{b + 3}], v{T0} offset:{p * 12288 + e * 1024}')
    A('s_waitcnt lgkmcnt(0)')
    for e in range(3):
        b = 16 * e
        for h in (0, 2):
            A(f'v_pk_add_f32 v[{b + h}:{b + h + 1}], v[{b + h}:{b + h + 1}], v[{b + 4 + h}:{b + 5 + h}]')
            A(f'v_pk_add_f32 v[{b + 8 + h}:{b + 9 + h}], v[{b + 8 + h}:{b + 9 + h}], v[{b + 12 + h}:{b + 13 + h}]')
        for h in (0, 2):
            A(f'v_pk_add_f32 v[{b + h}:{b + h + 1}], v[{b + h}:{b + h + 1}], v[{b + 8 + h}:{b + 9 + h}]')
        A(f'buffer_store_dwordx4 v[{b}:{b + 3}], v{vL16}, s[40:43], s96 offen offset:{e * 1024}{ST}')
```

```python
from asmlib import Asm
from gen_k1b import WS_A, WS_Q, WS_KV, WS_G, WS_FLAG, WS_BYTES, f2u, LOG2E

AUX_LDS = 131072
K3_LDS = AUX_LDS + 8192
DPP = ' row_mask:0xf bank_mask:0xf'
NV = 168


class VM:
    def __init__(self):
        self.n = 0
        self.pos = {}

    def issue(self, tag=None):
        self.n += 1
        if tag is not None:
            self.pos[tag] = self.n

    def cnt(self, tag):
        return self.n - self.pos[tag]


def gen_k3(name, opts=None):
    opts = opts or {}
    D = 7
    A = Asm()
    A.raw(f'.globl {name}\n.p2align 8\n.type {name},@function\n{name}:')
    A('s_cmp_ge_u32 s2, 256')
    A(f's_cbranch_scc1 {name}_end')
    A('s_load_dwordx2 s[4:5], s[0:1], 24')
    A('s_load_dwordx2 s[6:7], s[0:1], 56')
    A('s_load_dwordx2 s[8:9], s[0:1], 72')
    A('s_load_dwordx2 s[10:11], s[0:1], 88')
    A('s_load_dwordx2 s[12:13], s[0:1], 0')
    A('s_load_dwordx2 s[14:15], s[0:1], 16')
    A('s_load_dwordx2 s[28:29], s[0:1], 64')
    A('v_lshrrev_b32 v1, 6, v0')
    A('v_and_b32 v0, 63, v0')
    A('v_readfirstlane_b32 s87, v1')
    A('s_waitcnt lgkmcnt(0)')
    A(f's_mov_b32 s40, s10\ns_mov_b32 s41, s11\ns_mov_b32 s42, {WS_BYTES}\ns_mov_b32 s43, 0x00020000')
    A('s_cmp_ge_u32 s87, 8')
    A(f's_cbranch_scc1 {name}_aux')
    A('s_and_b32 s90, s2, 7')
    A('s_lshr_b32 s91, s2, 3')
    A('s_lshr_b32 s92, s90, 1')
    A('s_lshl_b32 s92, s92, 2')
    A('s_and_b32 s93, s91, 3')
    A('s_add_u32 s86, s92, s93')
    A('s_and_b32 s92, s90, 1')
    A('s_lshl_b32 s92, s92, 3')
    A('s_lshr_b32 s93, s91, 2')
    A('s_add_u32 s85, s92, s93')
    A('s_and_b32 s88, s87, 3')
    A('s_lshr_b32 s89, s87, 2')
    A('s_mov_b32 s16, s6\ns_mov_b32 s17, s7\ns_mov_b32 s18, %d\ns_mov_b32 s19, 0x00020000' % (3584 * 2048))
    A('s_mov_b32 s20, s4\ns_mov_b32 s21, s5\ns_mov_b32 s22, %d\ns_mov_b32 s23, 0x00020000' % (1024 * 2048))
    A('s_mov_b32 s24, s8\ns_mov_b32 s25, s9\ns_mov_b32 s26, 0x400000\ns_mov_b32 s27, 0x00020000')
    accB, accA = 0, 32
    vB = 64
    vA = 96
    misc = vA + D * 8
    vL16, vDW, vG, vPoll, vGo = misc, misc + 1, misc + 2, misc + 3, misc + 4
    vOut = misc + 5
    vRB = misc + 8
    assert misc + 16 <= NV
    A(f'v_lshlrev_b32 v{vL16}, 4, v0')
    A('v_lshrrev_b32 v2, 3, v0')
    A('v_and_b32 v3, 6, v2')
    A('v_and_b32 v4, 7, v0')
    A('v_xor_b32 v4, v4, v3')
    A('v_lshlrev_b32 v4, 4, v4')
    A('v_lshl_add_u32 v4, v2, 11, v4')
    A('s_lshl_b32 s90, s85, 7')
    A(f'v_add_u32 v{vDW}, s90, v4')
    A('s_lshl_b32 s48, s87, 14')
    A('s_lshl_b32 s62, s87, 10')
    A('v_lshrrev_b32 v2, 2, v0')
    A('v_lshrrev_b32 v3, 1, v2')
    A('v_and_b32 v3, 3, v3')
    A('v_and_b32 v4, 3, v0')
    A('v_lshlrev_b32 v4, 3, v4')
    A('v_lshl_add_u32 v4, v2, 7, v4')
    A('s_lshl_b32 s91, s89, 12')
    A('v_add_u32 v4, s91, v4')
    for T in range(4):
        A(f'v_xor_b32 v5, {T}, v3')
        A(f'v_lshl_add_u32 v{vRB + T}, v5, 5, v4')
        A(f'v_add_u32 v{vRB + 4 + T}, 0x10000, v{vRB + T}')
    A('s_lshl_b32 s92, s86, 3')
    A('s_lshl_b32 s93, s88, 1')
    A('s_add_u32 s92, s92, s93')
    A('s_add_u32 s94, s92, s89')
    A('s_xor_b32 s95, s94, 1')
    A('s_lshl_b32 s93, s89, 10')
    A('s_mul_i32 s50, s94, 147456')
    A('s_add_u32 s50, s50, s93')
    A('s_mul_i32 s51, s95, 147456')
    A('s_add_u32 s51, s51, s93')
    A('v_and_b32 v2, 15, v0')
    A(f'v_lshlrev_b32 v{vGo}, 2, v2')
    A('s_lshl_b32 s52, s94, 6')
    A(f's_add_u32 s52, s52, {WS_G}')
    A('s_lshr_b32 s53, s86, 1')
    A('s_lshl_b32 s53, s53, 7')
    A(f's_add_u32 s53, s53, {WS_FLAG}')
    A('v_lshrrev_b32 v3, 4, v0')
    A('v_lshlrev_b32 v3, 3, v3')
    A('v_lshl_add_u32 v3, v2, 11, v3')
    A('s_lshl_b32 s93, s94, 15')
    A('s_add_u32 s93, s93, s90')
    A(f'v_add_u32 v{vOut}, s93, v3')
    vm = VM()
    NST = 18
    NN = 72

    def dma_stage(s):
        srd = 's[16:19]' if s < 14 else 's[20:23]'
        ops = []
        for i in range(4):
            o = []
            if s == 14 and i == 0:
                o.append('s_lshl_b32 s48, s87, 14')
            o += [f's_add_u32 m0, s62, {(s % 4) * 32768 + i * 8192}',
                  f'buffer_load_dwordx4 v{vDW}, {srd}, s48 offen lds',
                  f's_add_u32 s48, s48, {64 * 2048}']
            ops.append(o)
        return ops

    def a_load(n):
        r = vA + (n % D) * 8
        md = ' sc1' if n >= 56 else ''
        return [f'buffer_load_dwordx4 v[{r}:{r + 3}], v{vL16}, s[40:43], s50 offen{md}',
                f'buffer_load_dwordx4 v[{r + 4}:{r + 7}], v{vL16}, s[40:43], s51 offen{md}',
                's_add_u32 s50, s50, 2048', 's_add_u32 s51, s51, 2048']

    def b_reads(n):
        s, p = n >> 2, n & 3
        slot = s % 4
        out = []
        for T in range(4):
            for a in range(2):
                r = vB + (n & 1) * 16 + T * 4 + 2 * a
                base = vRB + T + (4 if slot >= 2 else 0)
                off = (slot & 1) * 32768 + p * 8192 + a * 2048
                out.append(f'ds_read_b64_tr_b16 v[{r}:{r + 1}], v{base} offset:{off}')
        return out

    def E(r):
        if opts.get('k3_no_mfma') and r.startswith('v_mfma'):
            return
        if opts.get('k3_no_a') and r.startswith('buffer_load_dwordx4') and 's[40:43]' in r:
            r = r.replace('s50', '0').replace('s51', '0')
        if opts.get('k3_no_w') and r.startswith('buffer_load') and ' lds' in r:
            r = r.replace('s48', '0')
        A(r)

    for s in range(4):
        for o in dma_stage(s):
            for ins in o:
                E(ins)
            vm.issue(('W', s))
        if s == 0:
            for n in range(4):
                for ins in a_load(n):
                    E(ins)
                vm.issue(); vm.issue(('A', n))
        if s == 1:
            for n in range(4, D):
                for ins in a_load(n):
                    E(ins)
                vm.issue(); vm.issue(('A', n))
    A(f's_waitcnt vmcnt({vm.cnt(("W", 0))})')
    A('s_barrier')
    for ins in b_reads(0):
        A(ins)
    NPOLL = 40
    for n in range(NN):
        s, p = n >> 2, n & 3
        last = p == 3
        w = vm.cnt(('A', n))
        if last and s + 1 < NST:
            w = min(w, vm.cnt(('W', s + 1)))
        if n == 47:
            w = min(w, vm.cnt('poll'))
        A(f's_waitcnt vmcnt({min(w, 63)}) lgkmcnt(0)')
        if n == 47:
            A(f'v_readfirstlane_b32 s90, v{vPoll}')
            A('s_cmp_ge_u32 s90, 128')
            A(f's_cbranch_scc1 {name}_rdy')
            A('s_mov_b32 s91, 200000')
            A.label(f'{name}_spin')
            A('s_sleep 4')
            A(f'buffer_load_dword v{vPoll}, v{vGo}, s[40:43], s53 offen sc1')
            A('s_waitcnt vmcnt(0)')
            A(f'v_readfirstlane_b32 s90, v{vPoll}')
            A('s_cmp_ge_u32 s90, 128')
            A(f's_cbranch_scc1 {name}_rdy')
            A('s_sub_u32 s91, s91, 1')
            A('s_cmp_lg_u32 s91, 0')
            A(f's_cbranch_scc1 {name}_spin')
            A.label(f'{name}_rdy')
        if last and s + 1 < NST:
            A('s_barrier')
        fill = [[] for _ in range(8)]
        if n + 1 < NN:
            for i, ins in enumerate(b_reads(n + 1)):
                fill[i // 2].append(ins)
        dm = []
        if last and s + 4 < NST:
            dm = dma_stage(s + 4)
        if n == NPOLL:
            A(f'buffer_load_dword v{vPoll}, v{vGo}, s[40:43], s53 offen sc1')
            vm.issue('poll')
        if n == 48:
            A(f'buffer_load_dword v{vG}, v{vGo}, s[40:43], s52 offen sc1')
            vm.issue('g')
        accb = accB if n < 56 else accA
        first = n in (0, 56)
        ar = vA + (n % D) * 8
        i = 0
        for T in range(4):
            b = vB + (n & 1) * 16 + T * 4
            for u in range(2):
                c = accb + (u * 4 + T) * 4
                cin = '0' if first else f'v[{c}:{c + 3}]'
                E(f'v_mfma_f32_16x16x32_bf16 v[{c}:{c + 3}], v[{b}:{b + 3}], v[{ar + 4 * u}:{ar + 4 * u + 3}], {cin}')
                for ins in fill[i]:
                    E(ins)
                if i >= 4 and i - 4 < len(dm):
                    for ins in dm[i - 4]:
                        E(ins)
                    vm.issue(('W', s + 4))
                i += 1
        if n + D < NN:
            for ins in a_load(n + D):
                E(ins)
            vm.issue(); vm.issue(('A', n + D))
    A('s_lshl_b32 s90, s87, 13')
    A('s_add_u32 s90, s90, 65536')
    A(f'v_add_u32 v{vB}, s90, v{vL16}')
    A('s_xor_b32 s90, s90, 32768')
    A(f'v_add_u32 v{vB + 1}, s90, v{vL16}')
    for T in range(4):
        A(f'ds_write_b128 v{vB}, v[{accB + 16 + 4 * T}:{accB + 19 + 4 * T}] offset:{T * 1024}')
        A(f'ds_write_b128 v{vB}, v[{accA + 16 + 4 * T}:{accA + 19 + 4 * T}] offset:{4096 + T * 1024}')
    A('s_waitcnt lgkmcnt(0)')
    A('s_barrier')
    for i in range(8):
        A(f'ds_read_b128 v[{vA + 4 * i}:{vA + 4 * i + 3}], v{vB + 1} offset:{i * 1024}')
    A('s_waitcnt vmcnt(0) lgkmcnt(0)')
    t0, t1 = vB + 2, vB + 3
    omg = vB + 4
    g = vG
    A(f'v_sub_f32 v{omg}, 1.0, v{g}')
    A(f'v_cvt_pk_bf16_f32 v{omg}, v{omg}, v{omg}')
    A(f'v_lshlrev_b32 v{omg}, 16, v{omg}')
    for T in range(4):
        cb = accB + T * 4
        ca = accA + T * 4
        for h in (0, 2):
            A(f'v_pk_add_f32 v[{cb + h}:{cb + h + 1}], v[{cb + h}:{cb + h + 1}], v[{vA + 4 * T + h}:{vA + 4 * T + h + 1}]')
            A(f'v_pk_add_f32 v[{ca + h}:{ca + h + 1}], v[{ca + h}:{ca + h + 1}], v[{vA + 16 + 4 * T + h}:{vA + 16 + 4 * T + h + 1}]')
        for (c, sc) in ((cb, omg), (ca, g)):
            A(f'v_cvt_pk_bf16_f32 v{t0}, v{c}, v{c + 1}')
            A(f'v_cvt_pk_bf16_f32 v{t1}, v{c + 2}, v{c + 3}')
            A(f'v_lshlrev_b32 v{c}, 16, v{t0}')
            A(f'v_and_b32 v{c + 1}, 0xffff0000, v{t0}')
            A(f'v_lshlrev_b32 v{c + 2}, 16, v{t1}')
            A(f'v_and_b32 v{c + 3}, 0xffff0000, v{t1}')
            for r in range(4):
                A(f'v_mul_f32 v{c + r}, v{sc}, v{c + r}')
            A(f'v_cvt_pk_bf16_f32 v{t0}, v{c}, v{c + 1}')
            A(f'v_cvt_pk_bf16_f32 v{t1}, v{c + 2}, v{c + 3}')
            A(f'v_lshlrev_b32 v{c}, 16, v{t0}')
            A(f'v_and_b32 v{c + 1}, 0xffff0000, v{t0}')
            A(f'v_lshlrev_b32 v{c + 2}, 16, v{t1}')
            A(f'v_and_b32 v{c + 3}, 0xffff0000, v{t1}')
        for r in range(4):
            A(f'v_add_f32 v{cb + r}, v{cb + r}, v{ca + r}')
        A(f'v_cvt_pk_bf16_f32 v{cb}, v{cb}, v{cb + 1}')
        A(f'v_cvt_pk_bf16_f32 v{cb + 1}, v{cb + 2}, v{cb + 3}')
        A(f'buffer_store_dwordx2 v[{cb}:{cb + 1}], v{vOut}, s[24:27], 0 offen offset:{T * 32}')
    A('s_endpgm')

    A.label(f'{name}_aux')
    A('s_sub_u32 s87, s87, 8')
    A('s_and_b32 s85, s2, 31')
    A('s_lshr_b32 s86, s2, 5')
    A('s_mov_b32 s16, s12\ns_mov_b32 s17, s13\ns_mov_b32 s18, 0x400000\ns_mov_b32 s19, 0x00020000')
    A('s_mov_b32 s20, s28\ns_mov_b32 s21, s29\ns_mov_b32 s22, 2048\ns_mov_b32 s23, 0x00020000')
    A('s_mov_b32 s44, s14\ns_mov_b32 s45, s15\ns_mov_b32 s46, 65536\ns_mov_b32 s47, 0x00020000')
    A('v_lshlrev_b32 v1, 4, v0')
    KP = 64
    A('s_mul_i32 s90, s85, 98304')
    A('s_mul_i32 s91, s87, 3072')
    A('s_add_u32 s90, s90, s91')
    A(f's_add_u32 s90, s90, {WS_KV}')
    for p in range(8):
        for e in range(3):
            A(f'buffer_load_dwordx4 v[{KP + (p * 3 + e) * 4}:{KP + 3 + (p * 3 + e) * 4}], v1, s[40:43], s90 offen offset:{e * 1024}')
        if p < 7:
            A('s_add_u32 s90, s90, 12288')
    A('v_and_b32 v2, 15, v0')
    A('v_lshrrev_b32 v3, 4, v0')
    A('v_lshlrev_b32 v4, 8, v3')
    A('v_lshl_add_u32 v4, v2, 1, v4')
    A('s_lshl_b32 s91, s85, 11')
    for ft in range(2):
        for jj in range(8):
            d = 16 * (jj >> 2) + (jj & 3)
            A(f'buffer_load_ushort v{20 + ft * 8 + jj}, v4, s[44:47], s91 offen offset:{d * 64 + ft * 32}')
    A('s_lshl_b32 s92, s86, 4')
    A('s_lshl_b32 s93, s87, 2')
    A('s_add_u32 s92, s92, s93')
    A('s_lshl_b32 s93, s85, 7')
    A('s_add_u32 s93, s93, s92')
    A('s_lshl_b32 s93, s93, 10')
    A(f's_add_u32 s93, s93, {WS_Q}')
    for t in range(4):
        A(f'buffer_load_dwordx4 v[{40 + 4 * t}:{43 + 4 * t}], v1, s[40:43], s93 offen offset:{t * 1024}')
    A('s_barrier')
    A('s_barrier')
    A('s_waitcnt vmcnt(20)')
    for p in range(1, 8):
        for i in range(0, 12, 2):
            A(f'v_pk_add_f32 v[{KP + i}:{KP + i + 1}], v[{KP + i}:{KP + i + 1}], v[{KP + p * 12 + i}:{KP + p * 12 + i + 1}]')
    for e in range(3):
        A(f'v_cvt_pk_bf16_f32 v{KP + 4 * e}, v{KP + 4 * e}, v{KP + 1 + 4 * e}')
        A(f'v_cvt_pk_bf16_f32 v{KP + 1 + 4 * e}, v{KP + 2 + 4 * e}, v{KP + 3 + 4 * e}')
    A('s_lshr_b32 s90, s87, 1')
    A('s_lshl_b32 s90, s90, 10')
    A('s_and_b32 s91, s87, 1')
    A('s_lshl_b32 s91, s91, 3')
    A('s_add_u32 s90, s90, s91')
    A(f's_add_u32 s90, s90, {AUX_LDS}')
    A('v_add_u32 v5, s90, v1')
    for e in range(3):
        A(f'ds_write_b64 v5, v[{KP + 4 * e}:{KP + 1 + 4 * e}] offset:{e * 2048}')
    A('s_lshl_b32 s94, s86, 8')
    A('s_lshl_b32 s95, s85, 3')
    A('s_add_u32 s94, s94, s95')
    A('s_lshl_b32 s95, s87, 1')
    A('s_add_u32 s94, s94, s95')
    A('s_lshl_b32 s95, s94, 11')
    XR, GR = 100, 116
    for e in range(2):
        for hf in range(2):
            A(f'buffer_load_dwordx4 v[{XR + (e * 2 + hf) * 4}:{XR + 3 + (e * 2 + hf) * 4}], v1, s[16:19], s95 offen offset:{e * 2048 + hf * 1024}')
    for hf in range(2):
        A(f'buffer_load_dwordx4 v[{GR + hf * 4}:{GR + 3 + hf * 4}], v1, s[20:23], 0 offen offset:{hf * 1024}')
    A('s_waitcnt lgkmcnt(0)')
    A('s_barrier')
    KF = 76
    A(f'v_add_u32 v5, {AUX_LDS}, v1')
    for i in range(6):
        A(f'ds_read_b128 v[{KF + 4 * i}:{KF + 3 + 4 * i}], v5 offset:{i * 1024}')
    A('s_waitcnt vmcnt(6)')
    for i in range(8):
        A(f'v_lshl_or_b32 v{10 + i}, v{21 + 2 * i}, 16, v{20 + 2 * i}')
    A(f's_mov_b32 s96, {f2u(LOG2E)}')
    A(f's_mov_b32 s97, {f2u(LOG2E)}')
    A('s_mul_i32 s98, s92, 147456')
    A('s_add_u32 s95, s85, 112')
    A('s_lshl_b32 s95, s95, 10')
    A('s_add_u32 s98, s98, s95')
    PB = 124
    for t in range(4):
        q = 40 + 4 * t
        P = PB + 8 * t
        A(f'v_mfma_f32_16x16x32_bf16 v[{P}:{P + 3}], v[10:13], v[{q}:{q + 3}], 0')
        A(f'v_mfma_f32_16x16x32_bf16 v[{P + 4}:{P + 7}], v[14:17], v[{q}:{q + 3}], 0')
    A('s_waitcnt lgkmcnt(0)')
    order = [3, 2, 1, 0] if opts.get('rev') else [0, 1, 2, 3]
    if opts.get('rev'):
        A(f's_add_u32 s98, s98, {3 * 147456}')
    for t in order:
        P0 = PB + 8 * t
        P = [P0 + i for i in range(8)]
        ep, en = (20, 28) if t % 2 == 0 else (56, 64 - 0)
        if t % 2 == 1:
            ep, en = 56, 36
            en = 156
        mx, mn, tm, tn = (6, 7, 8, 9) if t % 2 == 0 else (2, 3, 4, 5)
        for i in range(0, 8, 2):
            A(f'v_cvt_pk_bf16_f32 v{ep + i}, v{P[i]}, v{P[i + 1]}')
        for i in range(0, 8, 2):
            A(f'v_lshlrev_b32 v{P[i]}, 16, v{ep + i}')
            A(f'v_and_b32 v{P[i + 1]}, 0xffff0000, v{ep + i}')
        A(f'v_max3_f32 v{mx}, v{P[0]}, v{P[1]}, v{P[2]}')
        A(f'v_min3_f32 v{mn}, v{P[0]}, v{P[1]}, v{P[2]}')
        A(f'v_max3_f32 v{mx}, v{mx}, v{P[3]}, v{P[4]}')
        A(f'v_min3_f32 v{mn}, v{mn}, v{P[3]}, v{P[4]}')
        A(f'v_max3_f32 v{mx}, v{mx}, v{P[5]}, v{P[6]}')
        A(f'v_min3_f32 v{mn}, v{mn}, v{P[5]}, v{P[6]}')
        A(f'v_max_f32 v{mx}, v{mx}, v{P[7]}')
        A(f'v_min_f32 v{mn}, v{mn}, v{P[7]}')
        for sw in ('v_permlane16_swap_b32', 'v_permlane32_swap_b32'):
            A(f'v_mov_b32 v{tm}, v{mx}')
            A(f'v_mov_b32 v{tn}, v{mn}')
            A(f'{sw} v{mx}, v{tm}')
            A(f'{sw} v{mn}, v{tn}')
            A(f'v_max_f32 v{mx}, v{mx}, v{tm}')
            A(f'v_min_f32 v{mn}, v{mn}, v{tn}')
        A(f'v_mul_f32 v{tm}, s96, v{mn}')
        A(f'v_mul_f32 v{tn}, s96, v{mn}')
        A(f'v_mul_f32 v{mn}, s96, v{mx}')
        A(f'v_mul_f32 v{mx}, s96, v{mx}')
        for h in range(0, 8, 2):
            src = P[h]
            A(f'v_pk_fma_f32 v[{ep + h}:{ep + h + 1}], v[{src}:{src + 1}], s[96:97], v[{mx}:{mn}] neg_lo:[0,0,1] neg_hi:[0,0,1]')
            A(f'v_pk_fma_f32 v[{en + h}:{en + h + 1}], v[{src}:{src + 1}], s[96:97], v[{tm}:{tn}] neg_lo:[1,0,0] neg_hi:[1,0,0]')
        for i in range(8):
            A(f'v_exp_f32 v{ep + i}, v{ep + i}')
            A(f'v_exp_f32 v{en + i}, v{en + i}')
        p0, p1 = P0, P0 + 4
        A(f'v_pk_add_f32 v[{p0}:{p0 + 1}], v[{ep}:{ep + 1}], v[{ep + 2}:{ep + 3}]')
        A(f'v_pk_add_f32 v[{p0 + 2}:{p0 + 3}], v[{ep + 4}:{ep + 5}], v[{ep + 6}:{ep + 7}]')
        A(f'v_pk_add_f32 v[{p1}:{p1 + 1}], v[{en}:{en + 1}], v[{en + 2}:{en + 3}]')
        A(f'v_pk_add_f32 v[{p1 + 2}:{p1 + 3}], v[{en + 4}:{en + 5}], v[{en + 6}:{en + 7}]')
        A(f'v_pk_add_f32 v[{p0}:{p0 + 1}], v[{p0}:{p0 + 1}], v[{p0 + 2}:{p0 + 3}]')
        A(f'v_pk_add_f32 v[{p1}:{p1 + 1}], v[{p1}:{p1 + 1}], v[{p1 + 2}:{p1 + 3}]')
        A(f'v_add_f32 v{mx}, v{p0}, v{p0 + 1}')
        A(f'v_add_f32 v{mn}, v{p1}, v{p1 + 1}')
        for sw in ('v_permlane16_swap_b32', 'v_permlane32_swap_b32'):
            A(f'v_mov_b32 v{tm}, v{mx}')
            A(f'v_mov_b32 v{tn}, v{mn}')
            A(f'{sw} v{mx}, v{tm}')
            A(f'{sw} v{mn}, v{tn}')
            A(f'v_add_f32 v{mx}, v{mx}, v{tm}')
            A(f'v_add_f32 v{mn}, v{mn}, v{tn}')
        A(f'v_rcp_f32 v{tm}, v{mn}')
        A(f'v_rcp_f32 v{tn}, v{mn}')
        A(f'v_rcp_f32 v{mn}, v{mx}')
        A(f'v_rcp_f32 v{mx}, v{mx}')
        for h in range(0, 8, 2):
            A(f'v_pk_mul_f32 v[{ep + h}:{ep + h + 1}], v[{ep + h}:{ep + h + 1}], v[{mx}:{mn}]')
            A(f'v_pk_mul_f32 v[{en + h}:{en + h + 1}], v[{en + h}:{en + h + 1}], v[{tm}:{tn}]')
        for i in range(4):
            A(f'v_cvt_pk_bf16_f32 v{p0 + i}, v{ep + 2 * i}, v{ep + 2 * i + 1}')
            A(f'v_cvt_pk_bf16_f32 v{p1 + i}, v{en + 2 * i}, v{en + 2 * i + 1}')
        dsts = [ep, ep + 4, en]
        for b in range(2):
            for dt in range(3):
                kf = KF + 4 * (dt * 2 + b)
                d = dsts[dt]
                cin = '0' if b == 0 else f'v[{d}:{d + 3}]'
                A(f'v_mfma_f32_16x16x32_bf16 v[{d}:{d + 3}], v[{kf}:{kf + 3}], v[{P0 + 4 * b}:{P0 + 4 * b + 3}], {cin}')
        dn = en + 4
        A(f'v_cvt_pk_bf16_f32 v{dn}, v{en}, v{en}')
        A(f'v_lshlrev_b32 v{dn}, 16, v{dn}')
        A(f'v_add_f32 v{dn}, {f2u(1e-6)}, v{dn}')
        A(f'v_cvt_pk_bf16_f32 v{dn}, v{dn}, v{dn}')
        A(f'v_lshlrev_b32 v{dn}, 16, v{dn}')
        A(f'v_rcp_f32 v{dn}, v{dn}')
        for i in range(0, 8, 2):
            A(f'v_cvt_pk_bf16_f32 v{P[i]}, v{ep + i}, v{ep + i + 1}')
        for i in range(0, 8, 2):
            A(f'v_lshlrev_b32 v{ep + i}, 16, v{P[i]}')
            A(f'v_and_b32 v{ep + i + 1}, 0xffff0000, v{P[i]}')
        for i in range(8):
            A(f'v_mul_f32 v{ep + i}, v{ep + i}, v{dn}')
        for i in range(4):
            A(f'v_cvt_pk_bf16_f32 v{P[i]}, v{ep + 2 * i}, v{ep + 2 * i + 1}')
        A(f'buffer_store_dwordx4 v[{P[0]}:{P[3]}], v1, s[40:43], s98 offen sc1')
        if opts.get('rev'):
            A('s_sub_u32 s98, s98, 147456')
        else:
            A('s_add_u32 s98, s98, 147456')
    A('s_waitcnt vmcnt(4)')
    for e in range(2):
        acc = 84 + e
        A(f'v_mov_b32 v{acc}, 0')
        for i in range(8):
            xr, gr = XR + e * 8 + i, GR + i
            A(f'v_lshlrev_b32 v86, 16, v{xr}')
            A(f'v_lshlrev_b32 v87, 16, v{gr}')
            A(f'v_fmac_f32 v{acc}, v86, v87')
            A(f'v_and_b32 v86, 0xffff0000, v{xr}')
            A(f'v_and_b32 v87, 0xffff0000, v{gr}')
            A(f'v_fmac_f32 v{acc}, v86, v87')
    for sh in (8, 4, 2, 1):
        for e in range(2):
            A(f'v_add_f32_dpp v{84 + e}, v{84 + e}, v{84 + e} row_ror:{sh}' + DPP)
    for e in range(2):
        for (sw) in ('v_permlane16_swap_b32', 'v_permlane32_swap_b32'):
            A(f'v_mov_b32 v86, v{84 + e}')
            A(f'{sw} v{84 + e}, v86')
            A(f'v_add_f32 v{84 + e}, v{84 + e}, v86')
    A('v_cvt_pk_bf16_f32 v86, v84, v85')
    A('v_lshlrev_b32 v84, 16, v86')
    A('v_and_b32 v85, 0xffff0000, v86')
    for e in range(2):
        A(f'v_mul_f32 v{84 + e}, {f2u(-LOG2E)}, v{84 + e}')
        A(f'v_exp_f32 v{84 + e}, v{84 + e}')
        A(f'v_add_f32 v{84 + e}, 1.0, v{84 + e}')
        A(f'v_rcp_f32 v{84 + e}, v{84 + e}')
    A('v_cvt_pk_bf16_f32 v86, v84, v85')
    A('v_lshlrev_b32 v84, 16, v86')
    A('v_and_b32 v85, 0xffff0000, v86')
    A('s_lshl_b32 s95, s94, 2')
    A(f's_add_u32 s95, s95, {WS_G}')
    A('v_mov_b32 v86, 0')
    A('v_mov_b32 v87, 1')
    A('s_lshl_b32 s90, s86, 7')
    A(f's_add_u32 s90, s90, {WS_FLAG}')
    A('s_mov_b64 exec, 1')
    A('buffer_store_dwordx2 v[84:85], v86, s[40:43], s95 offen sc1')
    A('s_waitcnt vmcnt(0)')
    A('buffer_atomic_add v87, v86, s[40:43], s90 offen')
    A.label(f'{name}_end')
    A('s_endpgm')
    return A.text(), NV, NV
```

```python
import sys
from asmlib import kd
import gen_k1b as gen_k1

HEADER = open('gated_mix__linear_kernel_hedgehog__glu_gated_geglu__prompt.s.ref').read().split('; Override launch')[0]

def build(kernels):
    out = HEADER
    for (name, text, vg, ac, grid, block, lds) in kernels:
        out += f'; @launch kernel={name} grid=({grid},1,1) block=({block},1,1) lds={lds}\n'
    out += '.amdgcn_target "amdgcn-amd-amdhsa--gfx950"\n.text\n'
    for (name, text, vg, ac, grid, block, lds) in kernels:
        out += text + '\n'
    for (name, text, vg, ac, grid, block, lds) in kernels:
        out += kd(name, vg, ac)
    return out

if __name__ == '__main__':
    which = sys.argv[1] if len(sys.argv) > 1 else 'all'
    outp = sys.argv[2] if len(sys.argv) > 2 else 'out.s'
    ks = []
    opts = dict((o.split('=')[0], (o.split('=')[1].replace('_', ' ') if '=' in o else True)) for o in sys.argv[3:])
    t, vg, ac = gen_k1.gen_k1('k1_kernel', opts=opts)
    ks.append(('k1_kernel', t, vg, ac, 256, 512, gen_k1.K1_LDS))
    if which == 'all':
        import gen_k23
        t, vg, ac = gen_k23.gen_k2('k2_kernel', opts=opts)
        ks.append(('k2_kernel', t, vg, ac, 256, 256, gen_k23.K2_LDS))
        t, vg, ac = gen_k23.gen_k3('k3_kernel', opts=opts)
        ks.append(('k3_kernel', t, vg, ac, 256, 256, gen_k23.K3_LDS))
    if which == 'v2':
        import gen_k3b
        t, vg, ac = gen_k3b.gen_k3('k3_kernel', opts=opts)
        ks.append(('k3_kernel', t, vg, ac, 256, 768, gen_k3b.K3_LDS))
    open(outp, 'w').write(build(ks))
```

```python
from asmlib import Asm
import struct

WS_A = 0
WS_Q = 0x1400000
WS_KV = 0x1800000
WS_G = 0x1C00000
WS_FLAG = 0x1D00000
WS_TS = 0x1E00000
WS_P = 0x2000000
WS_BYTES = 0x4000000
CLK3 = {65: 59, 66: 60, 67: 61, 68: 69}


def ts_stamp(A, opts, sdst, tmp=100):
    if opts.get('ts'):
        if opts.get('clk') and sdst in (37, 38):
            A(f's_memtime s[{tmp}:{tmp + 1}]')
            A('s_waitcnt lgkmcnt(0)')
            A(f's_mov_b32 s{sdst + 23}, s{tmp}')
        if opts.get('clk3') and sdst in (65, 66, 67, 68):
            A(f's_memtime s[{tmp}:{tmp + 1}]')
            A('s_waitcnt lgkmcnt(0)')
            A(f's_mov_b32 s{CLK3[sdst]}, s{tmp}')
        A(f's_memrealtime s[{tmp}:{tmp + 1}]')
        A('s_waitcnt lgkmcnt(0)')
        A(f's_mov_b32 s{sdst}, s{tmp}')


def ts_store(A, opts, kern, sregs, swave='s87', tmp=100):
    if not opts.get('ts'):
        return
    A(f's_memrealtime s[{tmp}:{tmp + 1}]')
    A('s_waitcnt lgkmcnt(0)')
    A(f's_mov_b32 s3, s{tmp}')
    A('s_waitcnt vmcnt(0)')
    A(f's_memrealtime s[{tmp}:{tmp + 1}]')
    A('s_waitcnt lgkmcnt(0)')
    regs = list(sregs) + [3, tmp]
    for i, r in enumerate(regs):
        A(f'v_mov_b32 v{i}, s{r}')
    A('s_lshl_b32 s3, s2, 4')
    A(f's_add_u32 s3, s3, {swave}')
    A('s_lshl_b32 s3, s3, 5')
    A(f's_add_u32 s3, s3, {WS_TS + kern * 131072}')
    A('v_mov_b32 v8, 0')
    A('s_mov_b64 exec, 1')
    A('buffer_store_dwordx4 v[0:3], v8, s[40:43], s3 offen')
    A('buffer_store_dwordx4 v[4:7], v8, s[40:43], s3 offen offset:16')

X_BASE = 0
W_BASE = 65536
WST = 20480
SPARE = W_BASE + 4 * WST
K1_LDS = 163840

C1 = -2.0 * 0.7978845608028654 * 1.4426950408889634
C2 = C1 * 0.044715
LOG2E = 1.4426950408889634


def f2u(f):
    return '0x%08x' % struct.unpack('<I', struct.pack('<f', f))[0]


def gen_k1(name, opts=None):
    opts = opts or {}
    MT = 4
    A = Asm()
    accum_off = 172

    def acc(nt, t):
        return (t * 10 + nt) * 4
    misc = 160
    a_A = [0, 16]
    a_B = 32
    a_BX = [60, 72]
    vXR = [misc, misc + 1]
    vBT = [[misc + 2, misc + 3], [misc + 4, misc + 5]]
    vB5 = [misc + 6, misc + 7]
    vDX = [misc + 8, misc + 9]
    vDW = [misc + 10, misc + 11]

    def Breg(jt, par):
        if jt < 7:
            return a_B + 4 * jt
        return a_BX[par] + 4 * (jt - 7)

    A.raw(f'.globl {name}\n.p2align 8\n.type {name},@function\n{name}:')
    A('s_cmp_ge_u32 s2, 256')
    A(f's_cbranch_scc1 {name}_end')
    ts_stamp(A, opts, 36)
    A('s_load_dwordx4 s[4:7], s[0:1], 0')
    A('s_load_dwordx4 s[8:11], s[0:1], 16')
    A('s_load_dwordx4 s[12:15], s[0:1], 40')
    A('s_load_dwordx2 s[60:61], s[0:1], 56')
    A('s_load_dwordx2 s[62:63], s[0:1], 88')
    A('v_lshrrev_b32 v1, 6, v0')
    A('v_and_b32 v0, 63, v0')
    A('v_readfirstlane_b32 s87, v1')
    A('s_and_b32 s85, s2, 7')
    A('s_lshr_b32 s91, s2, 3')
    A('s_and_b32 s83, s91, 3')
    A('s_lshr_b32 s86, s91, 2')
    A('s_and_b32 s88, s87, 3')
    A('s_lshr_b32 s89, s87, 2')
    A('s_and_b32 s82, s83, 1')
    A('s_waitcnt lgkmcnt(0)')
    A('s_mov_b32 s16, s4\ns_mov_b32 s17, s5\ns_mov_b32 s18, 0x400000\ns_mov_b32 s19, 0x00020000')
    A(f's_mov_b32 s40, s62\ns_mov_b32 s41, s63\ns_mov_b32 s42, {WS_BYTES}\ns_mov_b32 s43, 0x00020000')
    A('s_mov_b32 s44, s8\ns_mov_b32 s45, s9\ns_mov_b32 s46, 65536\ns_mov_b32 s47, 0x00020000')
    A('s_mov_b32 s35, 0x00020000')
    A('s_or_b32 s90, s2, s87')
    A('s_cmp_lg_u32 s90, 0')
    A(f's_cbranch_scc1 {name}_nz')
    A('v_lshlrev_b32 v2, 4, v0')
    A('v_mov_b32 v4, 0\nv_mov_b32 v5, 0\nv_mov_b32 v6, 0\nv_mov_b32 v7, 0')
    A(f's_mov_b32 s90, {WS_FLAG}')
    for i in range(17):
        A('buffer_store_dwordx4 v[4:7], v2, s[40:43], s90 offen')
        A('s_add_u32 s90, s90, 1024')
    A('s_waitcnt vmcnt(0)')
    A.label(f'{name}_nz')
    A('v_and_b32 v2, 15, v0')
    A('v_lshrrev_b32 v3, 4, v0')
    A('v_lshrrev_b32 v5, 3, v0')
    A('v_and_b32 v6, 7, v0')
    A('v_xor_b32 v6, v6, v3')
    A('v_lshlrev_b32 v7, 4, v6')
    A(f'v_lshl_add_u32 v{vDX[0]}, v5, 11, v7')
    A('v_xor_b32 v6, 4, v6')
    A('v_lshlrev_b32 v7, 4, v6')
    A(f'v_lshl_add_u32 v{vDX[1]}, v5, 11, v7')
    A('s_lshl_b32 s90, s86, 19')
    A('s_lshl_b32 s91, s87, 16')
    A('s_add_u32 s48, s90, s91')
    for q in range(1, 4):
        A(f's_add_u32 s{48 + q}, s48, {q * 16384}')
    A('s_lshl_b32 s58, s87, 12')
    A('v_lshrrev_b32 v5, 1, v2')
    A('v_xor_b32 v5, v5, v3')
    A('s_lshl_b32 s90, s88, 13')
    A('v_lshlrev_b32 v6, 7, v2')
    A('v_add_u32 v6, s90, v6')
    A(f'v_lshl_add_u32 v{vXR[0]}, v5, 4, v6')
    A('v_xor_b32 v5, 4, v5')
    A(f'v_lshl_add_u32 v{vXR[1]}, v5, 4, v6')
    A('v_lshrrev_b32 v5, 5, v0')
    A('v_and_b32 v6, 1, v3')
    A('v_lshrrev_b32 v7, 2, v0')
    A('v_and_b32 v7, 3, v7')
    A('v_lshl_add_u32 v7, v6, 2, v7')
    A('v_lshrrev_b32 v9, 1, v7')
    A('v_lshl_add_u32 v7, v5, 4, v7')
    A('v_and_b32 v8, 3, v0')
    A('v_lshlrev_b32 v8, 3, v8')
    A('s_lshl_b32 s90, s89, 1')
    for e in range(2):
        A(f's_add_u32 s91, s90, {e}')
        A('v_xor_b32 v10, s91, v9')
        A('v_lshlrev_b32 v10, 5, v10')
        A('v_lshl_add_u32 v10, v7, 7, v10')
        A(f'v_add3_u32 v{vBT[0][e]}, v10, v8, 0')
        A(f'v_add_u32 v{vBT[0][e]}, {W_BASE}, v{vBT[0][e]}')
        A(f'v_add_u32 v{vBT[1][e]}, {2 * WST}, v{vBT[0][e]}')
    A('v_xor_b32 v10, s89, v6')
    A('v_lshlrev_b32 v10, 5, v10')
    A('v_lshl_add_u32 v10, v7, 6, v10')
    A(f'v_add3_u32 v{vB5[0]}, v10, v8, 0')
    A(f'v_add_u32 v{vB5[0]}, {W_BASE + 4 * 4096}, v{vB5[0]}')
    A(f'v_add_u32 v{vB5[1]}, {2 * WST}, v{vB5[0]}')
    A('v_lshrrev_b32 v5, 3, v0')
    A('v_lshrrev_b32 v6, 2, v5')
    A('v_and_b32 v7, 3, v5')
    A('v_lshl_add_u32 v6, v6, 3, v7')
    A('v_and_b32 v7, 6, v5')
    A('v_and_b32 v8, 7, v0')
    A('v_xor_b32 v7, v7, v8')
    A('v_lshlrev_b32 v7, 4, v7')
    A('v_lshrrev_b32 v9, 2, v0')
    A('v_and_b32 v10, 3, v9')
    A('v_and_b32 v11, 4, v9')
    A('v_lshl_add_u32 v10, v11, 1, v10')
    A('v_and_b32 v12, 8, v9')
    A('v_lshrrev_b32 v12, 1, v12')
    A('v_add_u32 v10, v10, v12')
    A('v_lshrrev_b32 v11, 1, v11')
    A('v_and_b32 v12, 3, v0')
    A('v_xor_b32 v11, v11, v12')
    A('v_lshlrev_b32 v11, 4, v11')
    A('v_mul_u32_u24 v10, 7168, v10')
    A(f'v_add_u32 v{vDW[1]}, v10, v11')
    A('s_sub_u32 s90, s87, 1')
    A('s_lshl_b32 s90, s90, 8')
    A('s_add_u32 s90, s90, s2')
    A(f's_mov_b32 s32, s6\ns_mov_b32 s33, s7\ns_mov_b32 s34, {1024 * 6144}\ns_mov_b32 s59, {64 * 6144}')
    A('s_cmp_ge_u32 s90, 384')
    A('s_cselect_b32 s32, s12, s32')
    A('s_cselect_b32 s33, s13, s33')
    A(f's_cselect_b32 s34, {1024 * 7168}, s34')
    A(f's_cselect_b32 s59, {64 * 7168}, s59')
    A('s_cselect_b32 s91, 384, 0')
    A('s_cmp_ge_u32 s90, 832')
    A('s_cselect_b32 s32, s14, s32')
    A('s_cselect_b32 s33, s15, s33')
    A('s_cselect_b32 s91, 832, s91')
    A('s_cmp_ge_u32 s87, 6')
    A('s_cselect_b32 s32, s60, s32')
    A('s_cselect_b32 s33, s61, s33')
    A(f's_cselect_b32 s59, {512 * 1024}, s59')
    A('s_cselect_b32 s91, 1280, s91')
    A('s_cselect_b32 s93, 0, 2')
    A('s_sub_u32 s90, s90, s91')
    A('s_lshr_b32 s91, s90, 4')
    A('s_lshl_b32 s91, s91, 14')
    A('s_and_b32 s90, s90, 15')
    A('s_lshl_b32 s90, s90, 7')
    A('s_add_u32 s76, s90, s91')
    A('s_cmp_eq_u32 s87, 0')
    A('s_cselect_b32 s32, s4, s32')
    A('s_cselect_b32 s33, s5, s33')
    A('s_cselect_b32 s34, 0x400000, s34')
    A('s_cselect_b32 s59, 128, s59')
    A('s_lshl_b32 s90, s2, 14')
    A('s_cmp_eq_u32 s87, 0')
    A('s_cselect_b32 s76, s90, s76')
    A('s_mul_i32 s93, s93, s59')
    A('s_add_u32 s76, s76, s93')
    A('s_and_b32 s81, s87, 3')
    A('s_lshr_b32 s90, s81, 1')
    A('s_lshl_b32 s90, s90, 4')
    A('s_and_b32 s91, s81, 1')
    A('s_lshl_b32 s91, s91, 2')
    A('s_add_u32 s80, s90, s91')
    A('s_mul_i32 s79, s85, 896')
    A('s_cmp_ge_u32 s83, 2')
    A(f's_cbranch_scc1 {name}_typeA')

    def set_srd(slot, lo, hi, size):
        b = 20 + 4 * slot
        A(f's_mov_b32 s{b}, {lo}\ns_mov_b32 s{b + 1}, {hi}\ns_mov_b32 s{b + 2}, {size}\ns_mov_b32 s{b + 3}, 0x00020000')

    def set_m0(slot, sreg):
        A(f's_mov_b32 s{64 + 4 * slot}, {sreg}')
        for st in range(1, 4):
            A(f's_add_u32 s{64 + 4 * slot + st}, s{64 + 4 * slot + st - 1}, {WST}')

    def dma_x(slot):
        ops = []
        for q in range(4):
            ops.append([f's_add_u32 m0, s58, {X_BASE + slot * 32768 + q * 1024}',
                        f'buffer_load_dwordx4 v{vDX[q & 1]}, s[16:19], s{48 + q} offen lds',
                        f's_add_u32 s{48 + q}, s{48 + q}, 128'])
        return ops

    def dma_w(typ, hi, stage):
        ops = []
        for q in range(2 if hi else 3):
            srd = 20 + 4 * q
            vo = vDW[1] if (typ == 'B' and q == 2) else vDW[0]
            ops.append([f's_mov_b32 m0, s{64 + 4 * q + stage}',
                        f'buffer_load_dwordx4 v{vo}, s[{srd}:{srd + 3}], s{52 + q} offen lds',
                        f's_add_u32 s{52 + q}, s{52 + q}, s{55 + q}'])
        return ops

    def dma_pf():
        return [[f's_mov_b32 m0, {SPARE + 4096}',
                 f'buffer_load_dwordx4 v{vDX[0]}, s[32:35], s76 offen lds',
                 's_add_u32 s76, s76, s59']]

    def dma_pf_wo():
        return [['s_lshl_b32 s90, s87, 8',
                 's_add_u32 s90, s90, s2',
                 's_lshr_b32 s91, s90, 4',
                 's_lshl_b32 s91, s91, 14',
                 's_and_b32 s90, s90, 15',
                 's_lshl_b32 s90, s90, 7',
                 's_add_u32 s90, s90, s91',
                 f's_mov_b32 s32, s10', 's_mov_b32 s33, s11', f's_mov_b32 s34, {1024 * 2048}',
                 f's_mov_b32 m0, {SPARE + 4096}',
                 f'buffer_load_dwordx4 v{vDX[0]}, s[32:35], s90 offen lds']]

    def ntiles(typ):
        if typ == 'A':
            return [('q', 0, 0), ('q', 0, 1), ('k', 1, 0), ('k', 1, 1), ('v', 2, 0), ('v', 2, 1),
                    ('G', 3, 0), ('G', 3, 1), ('U', 4, 0), ('U', 4, 1)]
        return [('G', 0, 0), ('G', 0, 1), ('G', 1, 0), ('G', 1, 1), ('G', 'h', 0),
                ('U', 2, 0), ('U', 2, 1), ('U', 3, 0), ('U', 3, 1), ('U', 'h', 1)]

    def b_reads(typ, jt, stage, par):
        kind, ch, e = ntiles(typ)[jt]
        reg = Breg(jt, par)
        out = []
        for a in range(2):
            if ch == 'h':
                base = vB5[stage >> 1]
                off = (stage & 1) * WST + e * 2048 + a * 512
            else:
                base = vBT[stage >> 1][e]
                off = (stage & 1) * WST + ch * 4096 + a * 1024
            out.append(f'ds_read_b64_tr_b16 a[{reg + 2 * a}:{reg + 2 * a + 1}], v{base} offset:{off}')
        return out

    def a_reads(kb, par):
        slot, half = (kb >> 1) & 1, kb & 1
        return [f'ds_read_b128 a[{a_A[par] + 4 * t}:{a_A[par] + 4 * t + 3}], v{vXR[half]} offset:{X_BASE + slot * 32768 + t * 2048}'
                for t in range(MT)]

    def step(typ, hi, s, rd, dma, vmwait, barrier=True):
        par = s & 1
        nm = 10 * MT
        fill = [[] for _ in range(nm)]
        if rd and not opts.get('no_reads'):
            rstage = (s + 1) % 4
            early = a_reads(s + 1, par ^ 1)
            for jt in range(7, 10):
                early += b_reads(typ, jt, rstage, par ^ 1)
            for q, ins in enumerate(early):
                fill[q].append(ins)
            for jt in range(7):
                r2 = b_reads(typ, jt, rstage, par ^ 1)
                fill[MT * jt + MT - 1].append(r2[0])
                fill[MT * jt + MT].append(r2[1])
        if dma == 'wo':
            if not opts.get('no_pf'):
                fill[MT + 6] += dma_pf_wo()[0]
        elif dma and not opts.get('no_dma'):
            ops = []
            if s & 1:
                ops += dma_x((s >> 1) & 1)
            ops += dma_w(typ, hi, s)
            if s & 1 and not opts.get('no_pf'):
                ops += dma_pf()
            start = MT + 6
            stride = (nm - start - 2) // len(ops)
            for q, o in enumerate(ops):
                fill[start + q * stride] += o
        tl = ntiles(typ)
        idx = 0
        for jt in range(10):
            b = Breg(jt, par)
            for t in range(MT):
                a = a_A[par] + 4 * t
                c = acc(jt, t)
                c = f'v[{c}:{c + 3}]'
                if opts.get('no_mfma'):
                    pass
                elif opts.get('mf32'):
                    if t & 1:
                        ci = (jt * 2 + (t >> 1)) % 10
                        A(f'v_mfma_f32_32x32x16_bf16 v[{16 * ci}:{16 * ci + 15}], a[{b}:{b + 3}], a[{a}:{a + 3}], v[{16 * ci}:{16 * ci + 15}]')
                elif tl[jt][0] == 'v':
                    A(f'v_mfma_f32_16x16x32_bf16 {c}, a[{a}:{a + 3}], a[{b}:{b + 3}], {c}')
                else:
                    A(f'v_mfma_f32_16x16x32_bf16 {c}, a[{b}:{b + 3}], a[{a}:{a + 3}], {c}')
                for ins in fill[idx]:
                    A(ins)
                idx += 1
        if barrier:
            if isinstance(vmwait, tuple):
                lab = f'{name}_{typ}{hi}_w{s}'
                A(f's_waitcnt vmcnt({vmwait[0]}) lgkmcnt(0)')
                A('s_cmp_eq_u32 s84, 7')
                A(f's_cbranch_scc1 {lab}')
                A(f's_waitcnt vmcnt({vmwait[1]})')
                A.label(lab)
            elif vmwait is not None:
                A(f's_waitcnt vmcnt({vmwait}) lgkmcnt(0)')
            else:
                A('s_waitcnt lgkmcnt(0)')
            A('s_barrier')

    def body(typ, hi):
        tag = f'{name}_{typ}{hi}'
        nw = 2 if hi else 3
        npf = 0 if opts.get('no_pf') else 1
        NB0 = 4 * npf
        seq = dma_x(0) + dma_w(typ, hi, 0) + dma_w(typ, hi, 1) + dma_x(1) + dma_w(typ, hi, 2) + dma_w(typ, hi, 3)
        for i in range(NB0):
            seq += dma_pf()
        for o in seq:
            for ins in o:
                A(ins)
        ntot = 8 + 4 * nw + NB0
        if typ == 'A':
            A(f's_waitcnt vmcnt({ntot})')
            for i in range(8):
                A(f'v_lshl_or_b32 v{100 + i}, v{109 + 2 * i}, 16, v{108 + 2 * i}')
            A('v_lshlrev_b32 v5, 4, v0')
            A('s_lshl_b32 s90, s89, 11')
            A('v_add_u32 v5, s90, v5')
            A(f'v_add_u32 v5, {SPARE}, v5')
            A('ds_write_b128 v5, v[100:103]')
            A('ds_write_b128 v5, v[104:107] offset:1024')
            A('s_waitcnt lgkmcnt(0)')
        for i in range(160):
            A(f'v_mov_b32 v{i}, 0')
        A(f's_waitcnt vmcnt({ntot - 4 - nw})')
        A('s_barrier')
        for ins in a_reads(0, 0):
            A(ins)
        for jt in range(10):
            for ins in b_reads(typ, jt, 0, 0):
                A(ins)
        A(f's_waitcnt vmcnt({4 + 2 * nw + NB0}) lgkmcnt(0)')
        A('s_barrier')
        A('s_mov_b32 s84, 7')
        ts_stamp(A, opts, 37)
        A.flush_hazards()
        A.label(f'{tag}_loop')
        step(typ, hi, 0, True, True, (2 * nw + NB0, 2 * nw + npf))
        step(typ, hi, 1, True, True, (2 * nw + 4 + npf + NB0, 2 * nw + 4 + 2 * npf))
        step(typ, hi, 2, True, True, 2 * nw + npf)
        step(typ, hi, 3, True, True, 2 * nw + 4 + 2 * npf)
        A('s_sub_u32 s84, s84, 1')
        A('s_cmp_lg_u32 s84, 0')
        A(f's_cbranch_scc1 {tag}_loop')
        step(typ, hi, 0, True, False, nw + npf)
        step(typ, hi, 1, True, False, npf)
        step(typ, hi, 2, True, 'wo', None)
        step(typ, hi, 3, False, False, None, barrier=False)
        ts_stamp(A, opts, 38)

    A('s_mul_i32 s90, s82, 384')
    A('s_add_u32 s90, s90, s79')
    A('s_cmp_ge_u32 s87, 4')
    A('s_cselect_b32 s91, 0, 128')
    A('s_add_u32 s90, s90, s91')
    A('s_mul_i32 s91, s80, 7168')
    A('s_add_u32 s52, s90, s91')
    A('s_mov_b32 s53, s52')
    set_srd(0, 's12', 's13', 1024 * 7168)
    set_srd(1, 's14', 's15', 1024 * 7168)
    A('s_cmp_ge_u32 s87, 4')
    A('s_cselect_b32 s90, 0, 4096')
    A('s_lshl_b32 s91, s81, 10')
    A('s_add_u32 s90, s90, s91')
    A(f's_add_u32 s90, s90, {W_BASE}')
    set_m0(0, 's90')
    A('s_add_u32 s90, s90, 8192')
    set_m0(1, 's90')
    A('s_and_b32 s90, s87, 2')
    A('s_cmp_eq_u32 s90, 0')
    A('s_cselect_b32 s28, s12, s14')
    A('s_cselect_b32 s29, s13, s15')
    A(f's_mov_b32 s30, {1024 * 7168}\ns_mov_b32 s31, 0x00020000')
    A('s_and_b32 s91, s87, 1')
    A(f's_mul_i32 s91, s91, {16 * 7168}')
    A('s_lshl_b32 s92, s82, 6')
    A('s_add_u32 s91, s91, s92')
    A('s_add_u32 s91, s91, s79')
    A('s_add_u32 s54, s91, 256')
    A('s_lshl_b32 s90, s81, 10')
    A(f's_add_u32 s90, s90, {W_BASE + 16384}')
    set_m0(2, 's90')
    for q in range(3):
        A(f's_mov_b32 s{55 + q}, {32 * 7168}')
    A('v_mul_u32_u24 v6, 7168, v6')
    A(f'v_add_u32 v{vDW[0]}, v6, v7')
    A('s_cmp_ge_u32 s87, 4')
    A(f's_cbranch_scc1 {name}_B1')
    body('B', 0)
    A(f's_branch {name}_epiB')
    A.label(f'{name}_B1')
    body('B', 1)
    A.label(f'{name}_epiB')
    if not opts.get('no_epi'):
        epilogue_B(A, name, acc, misc, opts)
    ts_store(A, opts, 0, [36, 37, 38] + ([60, 61] if opts.get('clk') else []))
    A(f's_branch {name}_end')

    A.label(f'{name}_typeA')
    A('s_lshl_b32 s78, s85, 1')
    A('s_add_u32 s78, s78, s82')
    A('v_lshlrev_b32 v4, 8, v3')
    A('v_lshl_add_u32 v4, v2, 1, v4')
    A('s_lshl_b32 s77, s78, 1')
    A('s_add_u32 s77, s77, s89')
    A('s_lshl_b32 s90, s77, 11')
    for ft in range(2):
        for jj in range(8):
            d = 16 * (jj >> 2) + (jj & 3)
            A(f'buffer_load_ushort v{108 + ft * 8 + jj}, v4, s[44:47], s90 offen offset:{d * 64 + ft * 32}')
    A('s_cmp_ge_u32 s87, 4')
    A(f's_cbranch_scc1 {name}_A1')
    A('s_mul_i32 s91, s80, 6144')
    A('s_lshl_b32 s90, s78, 7')
    A('s_add_u32 s52, s90, s91')
    A('s_add_u32 s53, s52, 2048')
    A('s_add_u32 s54, s52, 4096')
    A('s_lshl_b32 s90, s81, 10')
    A(f's_add_u32 s90, s90, {W_BASE}')
    for q in range(3):
        set_srd(q, 's6', 's7', 1024 * 6144)
        A(f's_mov_b32 s{55 + q}, {32 * 6144}')
        set_m0(q, 's90')
        A('s_add_u32 s90, s90, 4096')
    A('v_mul_u32_u24 v6, 6144, v6')
    A(f'v_add_u32 v{vDW[0]}, v6, v7')
    body('A', 0)
    A(f's_branch {name}_epiA')
    A.label(f'{name}_A1')
    A('s_mul_i32 s91, s80, 7168')
    A('s_lshl_b32 s90, s82, 7')
    A('s_add_u32 s90, s90, s79')
    A('s_add_u32 s90, s90, 640')
    A('s_add_u32 s52, s90, s91')
    A('s_mov_b32 s53, s52')
    set_srd(0, 's12', 's13', 1024 * 7168)
    set_srd(1, 's14', 's15', 1024 * 7168)
    A('s_lshl_b32 s90, s81, 10')
    A(f's_add_u32 s90, s90, {W_BASE + 3 * 4096}')
    for q in range(2):
        A(f's_mov_b32 s{55 + q}, {32 * 7168}')
        set_m0(q, 's90')
        A('s_add_u32 s90, s90, 4096')
    A('v_mul_u32_u24 v6, 7168, v6')
    A(f'v_add_u32 v{vDW[0]}, v6, v7')
    body('A', 1)
    A.label(f'{name}_epiA')
    if not opts.get('no_epi'):
        epilogue_A(A, name, acc, misc, opts)
    ts_store(A, opts, 0, [36, 37, 38] + ([60, 61] if opts.get('clk') else []))
    A.label(f'{name}_end')
    A('s_endpgm')
    return A.text(), 256, accum_off


def epi_common(A, misc):
    vL16 = misc
    vC1 = misc + 2
    A('v_mbcnt_lo_u32_b32 v%d, -1, 0' % vL16)
    A('v_mbcnt_hi_u32_b32 v%d, -1, v%d' % (vL16, vL16))
    A(f'v_lshlrev_b32 v{vL16}, 4, v{vL16}')
    A(f'v_mov_b32 v{vC1}, {f2u(C1)}')
    A(f'v_mov_b32 v{vC1 + 1}, {f2u(C1)}')
    A(f's_mov_b32 s98, {f2u(C2)}')
    A(f's_mov_b32 s99, {f2u(C2)}')
    A('s_lshl_b32 s90, s86, 4')
    A('s_lshl_b32 s91, s88, 2')
    A('s_add_u32 s90, s90, s91')
    A('s_mul_i32 s91, s90, 147456')
    A('s_mul_i32 s92, s85, 14')


def gelu_tile(A, misc, g, u, out2, tmp):
    vC1 = misc + 2
    for h in (0, 2):
        A(f'v_pk_mul_f32 v[{tmp + h}:{tmp + h + 1}], v[{g + h}:{g + h + 1}], v[{g + h}:{g + h + 1}]')
    for h in (0, 2):
        A(f'v_pk_fma_f32 v[{tmp + h}:{tmp + h + 1}], v[{tmp + h}:{tmp + h + 1}], s[98:99], v[{vC1}:{vC1 + 1}]')
    for h in (0, 2):
        A(f'v_pk_mul_f32 v[{tmp + h}:{tmp + h + 1}], v[{tmp + h}:{tmp + h + 1}], v[{g + h}:{g + h + 1}]')
    for r in range(4):
        A(f'v_exp_f32 v{tmp + r}, v{tmp + r}')
    for h in (0, 2):
        A(f'v_pk_mul_f32 v[{g + h}:{g + h + 1}], v[{g + h}:{g + h + 1}], v[{u + h}:{u + h + 1}]')
    for h in (0, 2):
        A(f'v_pk_add_f32 v[{tmp + h}:{tmp + h + 1}], v[{tmp + h}:{tmp + h + 1}], 1.0 op_sel_hi:[1,0]')
    for r in range(4):
        A(f'v_rcp_f32 v{tmp + r}, v{tmp + r}')
    for h in (0, 2):
        A(f'v_pk_mul_f32 v[{g + h}:{g + h + 1}], v[{g + h}:{g + h + 1}], v[{tmp + h}:{tmp + h + 1}]')
    A(f'v_cvt_pk_bf16_f32 v{out2[0]}, v{g}, v{g + 1}')
    A(f'v_cvt_pk_bf16_f32 v{out2[1]}, v{g + 2}, v{g + 3}')


def epilogue_B(A, name, acc, misc, opts):
    vL16 = misc
    T0, T1 = misc + 4, misc + 8
    ST = opts.get('st_mod', '')
    epi_common(A, misc)
    A('s_mul_i32 s93, s82, 6')
    A('s_add_u32 s93, s93, s92')
    A('s_add_u32 s93, s93, s89')
    A('s_lshl_b32 s93, s93, 10')
    A('s_add_u32 s94, s93, s91')
    A('s_add_u32 s93, s92, s82')
    A('s_add_u32 s93, s93, 4')
    A('s_lshl_b32 s93, s93, 10')
    A('s_add_u32 s95, s93, s91')
    A('s_lshl_b32 s93, s89, 3')
    A('s_add_u32 s95, s95, s93')
    for t in range(4):
        for p in range(2):
            g0, g1, u0, u1 = acc(2 * p, t), acc(2 * p + 1, t), acc(5 + 2 * p, t), acc(6 + 2 * p, t)
            gelu_tile(A, misc, g0, u0, [u0, u0 + 1], T0)
            gelu_tile(A, misc, g1, u1, [u0 + 2, u0 + 3], T1)
            A(f'buffer_store_dwordx4 v[{u0}:{u0 + 3}], v{vL16}, s[40:43], s94 offen offset:{p * 2048}{ST}')
        g0, u0 = acc(4, t), acc(9, t)
        gelu_tile(A, misc, g0, u0, [u0, u0 + 1], T0)
        A(f'buffer_store_dwordx2 v[{u0}:{u0 + 1}], v{vL16}, s[40:43], s95 offen{ST}')
        if t < 3:
            A('s_add_u32 s94, s94, 147456')
            A('s_add_u32 s95, s95, 147456')


def epilogue_A(A, name, acc, misc, opts):
    vL16 = misc
    T0, T1 = misc + 4, misc + 8
    ST = opts.get('st_mod', '')
    epi_common(A, misc)
    aW = 76
    aKV = 0
    A('s_lshl_b32 s97, s89, 11')
    A(f's_add_u32 s97, s97, {SPARE}')
    A(f'v_add_u32 v{T0}, s97, v{vL16}')
    A(f'ds_read_b128 a[{aW}:{aW + 3}], v{T0}')
    A(f'ds_read_b128 a[{aW + 4}:{aW + 7}], v{T0} offset:1024')
    A('s_lshl_b32 s93, s82, 1')
    A('s_add_u32 s93, s93, s92')
    A('s_add_u32 s93, s93, s89')
    A('s_add_u32 s93, s93, 10')
    A('s_lshl_b32 s93, s93, 10')
    A('s_add_u32 s94, s93, s91')
    A('s_lshl_b32 s96, s77, 7')
    A('s_add_u32 s96, s96, s90')
    A('s_lshl_b32 s96, s96, 10')
    A(f's_add_u32 s96, s96, {WS_Q}')

    def pack(d, a, b):
        A(f'v_cvt_pk_bf16_f32 v{d}, v{a}, v{a + 1}')
        A(f'v_cvt_pk_bf16_f32 v{d + 1}, v{a + 2}, v{a + 3}')
        A(f'v_cvt_pk_bf16_f32 v{d + 2}, v{b}, v{b + 1}')
        A(f'v_cvt_pk_bf16_f32 v{d + 3}, v{b + 2}, v{b + 3}')
    for t in range(4):
        k0, k1 = acc(2, t), acc(3, t)
        pack(k0, k0, k1)
    for t in range(4):
        q0, q1 = acc(0, t), acc(1, t)
        pack(q0, q0, q1)
        A(f'buffer_store_dwordx4 v[{q0}:{q0 + 3}], v{vL16}, s[40:43], s96 offen offset:{t * 1024}{ST}')
    A('s_waitcnt lgkmcnt(0)')
    for t in range(4):
        k0 = acc(2, t)
        p0, p1 = acc(1, t), acc(3, t)
        A(f'v_mfma_f32_16x16x32_bf16 v[{p0}:{p0 + 3}], a[{aW}:{aW + 3}], v[{k0}:{k0 + 3}], 0')
        A(f'v_mfma_f32_16x16x32_bf16 v[{p1}:{p1 + 3}], a[{aW + 4}:{aW + 7}], v[{k0}:{k0 + 3}], 0')
    for tp in (0, 2):
        for dt in range(2):
            a0, a1 = acc(4 + dt, tp), acc(4 + dt, tp + 1)
            pack(a0, a0, a1)
    for t in range(4):
        g0, g1, u0, u1 = acc(6, t), acc(7, t), acc(8, t), acc(9, t)
        gelu_tile(A, misc, g0, u0, [u0, u0 + 1], T0)
        gelu_tile(A, misc, g1, u1, [u0 + 2, u0 + 3], T1)
        A(f'buffer_store_dwordx4 v[{u0}:{u0 + 3}], v{vL16}, s[40:43], s94 offen{ST}')
        if t < 3:
            A('s_add_u32 s94, s94, 147456')
    ones = acc(4, 1)
    for r in range(4):
        A(f'v_mov_b32 v{ones + r}, 0x3f803f80')
    idr = acc(5, 1)
    assert acc(6, 1) == idr + 4
    A(f'v_lshrrev_b32 v{T0}, 4, v{vL16}')
    A(f'v_and_b32 v{T0 + 1}, 15, v{T0}')
    A(f'v_lshrrev_b32 v{T0 + 2}, 4, v{T0}')
    A(f'v_lshrrev_b32 v{T0 + 3}, 2, v{T0 + 1}')
    A(f'v_and_b32 v{T1}, 1, v{T0 + 1}')
    A(f'v_lshlrev_b32 v{T1}, 4, v{T1}')
    A(f'v_mov_b32 v{T1 + 1}, 0x3f80')
    A(f'v_lshlrev_b32 v{T1 + 1}, v{T1}, v{T1 + 1}')
    A(f'v_cmp_eq_u32 vcc, v{T0 + 2}, v{T0 + 3}')
    A(f'v_cndmask_b32 v{T1 + 1}, 0, v{T1 + 1}, vcc')
    A(f'v_and_b32 v{T1 + 2}, 2, v{T0 + 1}')
    A(f'v_cmp_eq_u32 vcc, 0, v{T1 + 2}')
    A(f'v_cndmask_b32 v{idr + 2}, 0, v{T1 + 1}, vcc')
    A(f'v_cndmask_b32 v{idr + 3}, v{T1 + 1}, 0, vcc')
    for r in (0, 1, 4, 5):
        A(f'v_mov_b32 v{idr + r}, 0')
    I = [idr + 2, idr]
    A(f's_mov_b32 s96, {f2u(LOG2E)}')
    A(f's_mov_b32 s97, {f2u(LOG2E)}')
    phi = [acc(0, 0), acc(0, 1), acc(0, 2), acc(0, 3)]
    EP = [acc(6, 0), acc(6, 2)]
    EN = [acc(6, 3), acc(4, 3)]
    TR = [[acc(9, 0), acc(9, 1), acc(9, 2), acc(9, 3)], [acc(2, 0), acc(2, 1), acc(2, 2), acc(2, 3)]]
    SC = [T0, T1]
    for t in range(4):
        e = t & 1
        p0, p1 = acc(1, t), acc(3, t)
        P = [p0 + r for r in range(4)] + [p1 + r for r in range(4)]
        ep, en = EP[e], EN[e]
        mx, mn, tm, tn = SC[e], SC[e] + 1, SC[e] + 2, SC[e] + 3
        if opts.get('round_p'):
            for i in range(0, 8, 2):
                A(f'v_cvt_pk_bf16_f32 v{ep + i}, v{P[i]}, v{P[i + 1]}')
            for i in range(0, 8, 2):
                A(f'v_lshlrev_b32 v{P[i]}, 16, v{ep + i}')
                A(f'v_and_b32 v{P[i + 1]}, 0xffff0000, v{ep + i}')
        A(f'v_max3_f32 v{mx}, v{P[0]}, v{P[1]}, v{P[2]}')
        A(f'v_min3_f32 v{mn}, v{P[0]}, v{P[1]}, v{P[2]}')
        A(f'v_max3_f32 v{mx}, v{mx}, v{P[3]}, v{P[4]}')
        A(f'v_min3_f32 v{mn}, v{mn}, v{P[3]}, v{P[4]}')
        A(f'v_max3_f32 v{mx}, v{mx}, v{P[5]}, v{P[6]}')
        A(f'v_min3_f32 v{mn}, v{mn}, v{P[5]}, v{P[6]}')
        A(f'v_max_f32 v{mx}, v{mx}, v{P[7]}')
        A(f'v_min_f32 v{mn}, v{mn}, v{P[7]}')
        for sw in ('v_permlane16_swap_b32', 'v_permlane32_swap_b32'):
            A(f'v_mov_b32 v{tm}, v{mx}')
            A(f'v_mov_b32 v{tn}, v{mn}')
            A(f'{sw} v{mx}, v{tm}')
            A(f'{sw} v{mn}, v{tn}')
            A(f'v_max_f32 v{mx}, v{mx}, v{tm}')
            A(f'v_min_f32 v{mn}, v{mn}, v{tn}')
        A(f'v_mul_f32 v{tm}, s96, v{mn}')
        A(f'v_mul_f32 v{tn}, s96, v{mn}')
        A(f'v_mul_f32 v{mn}, s96, v{mx}')
        A(f'v_mul_f32 v{mx}, s96, v{mx}')
        for h in range(0, 8, 2):
            src = P[h]
            A(f'v_pk_fma_f32 v[{ep + h}:{ep + h + 1}], v[{src}:{src + 1}], s[96:97], v[{mx}:{mn}] neg_lo:[0,0,1] neg_hi:[0,0,1]')
            A(f'v_pk_fma_f32 v[{en + h}:{en + h + 1}], v[{src}:{src + 1}], s[96:97], v[{tm}:{tn}] neg_lo:[1,0,0] neg_hi:[1,0,0]')
        for i in range(8):
            A(f'v_exp_f32 v{ep + i}, v{ep + i}')
            A(f'v_exp_f32 v{en + i}, v{en + i}')
        A(f'v_pk_add_f32 v[{p0}:{p0 + 1}], v[{ep}:{ep + 1}], v[{ep + 2}:{ep + 3}]')
        A(f'v_pk_add_f32 v[{p0 + 2}:{p0 + 3}], v[{ep + 4}:{ep + 5}], v[{ep + 6}:{ep + 7}]')
        A(f'v_pk_add_f32 v[{p1}:{p1 + 1}], v[{en}:{en + 1}], v[{en + 2}:{en + 3}]')
        A(f'v_pk_add_f32 v[{p1 + 2}:{p1 + 3}], v[{en + 4}:{en + 5}], v[{en + 6}:{en + 7}]')
        A(f'v_pk_add_f32 v[{p0}:{p0 + 1}], v[{p0}:{p0 + 1}], v[{p0 + 2}:{p0 + 3}]')
        A(f'v_pk_add_f32 v[{p1}:{p1 + 1}], v[{p1}:{p1 + 1}], v[{p1 + 2}:{p1 + 3}]')
        A(f'v_add_f32 v{mx}, v{p0}, v{p0 + 1}')
        A(f'v_add_f32 v{mn}, v{p1}, v{p1 + 1}')
        for sw in ('v_permlane16_swap_b32', 'v_permlane32_swap_b32'):
            A(f'v_mov_b32 v{tm}, v{mx}')
            A(f'v_mov_b32 v{tn}, v{mn}')
            A(f'{sw} v{mx}, v{tm}')
            A(f'{sw} v{mn}, v{tn}')
            A(f'v_add_f32 v{mx}, v{mx}, v{tm}')
            A(f'v_add_f32 v{mn}, v{mn}, v{tn}')
        A(f'v_rcp_f32 v{tm}, v{mn}')
        A(f'v_rcp_f32 v{tn}, v{mn}')
        A(f'v_rcp_f32 v{mn}, v{mx}')
        A(f'v_rcp_f32 v{mx}, v{mx}')
        for h in range(0, 8, 2):
            A(f'v_pk_mul_f32 v[{ep + h}:{ep + h + 1}], v[{ep + h}:{ep + h + 1}], v[{mx}:{mn}]')
            A(f'v_pk_mul_f32 v[{en + h}:{en + h + 1}], v[{en + h}:{en + h + 1}], v[{tm}:{tn}]')
        for i in range(4):
            A(f'v_cvt_pk_bf16_f32 v{p0 + i}, v{ep + 2 * i}, v{ep + 2 * i + 1}')
            A(f'v_cvt_pk_bf16_f32 v{p1 + i}, v{en + 2 * i}, v{en + 2 * i + 1}')
        tr = TR[e]
        for F in range(4):
            src = p0 if F < 2 else p1
            ih = I[F & 1]
            A(f'v_mfma_f32_16x16x32_bf16 v[{tr[F]}:{tr[F] + 3}], v[{src}:{src + 3}], v[{ih}:{ih + 3}], 0')
        if t & 1:
            for tt in (t - 1, t):
                tr = TR[tt & 1]
                h = (tt & 1) * 2
                for F in range(4):
                    A(f'v_cvt_pk_bf16_f32 v{phi[F] + h}, v{tr[F]}, v{tr[F] + 1}')
                    A(f'v_cvt_pk_bf16_f32 v{phi[F] + h + 1}, v{tr[F] + 2}, v{tr[F] + 3}')
            tp = t - 1
            for F in range(4):
                for dt in range(3):
                    b = acc(4 + dt, tp) if dt < 2 else ones
                    c = aKV + (F * 3 + dt) * 4
                    cin = '0' if tp == 0 else f'a[{c}:{c + 3}]'
                    A(f'v_mfma_f32_16x16x32_bf16 a[{c}:{c + 3}], v[{phi[F]}:{phi[F] + 3}], v[{b}:{b + 3}], {cin}')
    A('s_mul_i32 s97, s87, 12288')
    A(f'v_add_u32 v{T0}, s97, v{vL16}')
    for i in range(12):
        A(f'ds_write_b128 v{T0}, a[{aKV + 4 * i}:{aKV + 4 * i + 3}] offset:{i * 1024}')
    A('s_waitcnt lgkmcnt(0)')
    A('s_barrier')
    A('s_lshl_b32 s96, s77, 3')
    A('s_add_u32 s96, s96, s86')
    A('s_mul_i32 s96, s96, 12288')
    A(f's_add_u32 s96, s96, {WS_KV}')
    A('s_mul_i32 s97, s88, 3072')
    A('s_add_u32 s96, s96, s97')
    A('s_mul_i32 s93, s89, 49152')
    A('s_add_u32 s97, s97, s93')
    A(f'v_add_u32 v{T0}, s97, v{vL16}')
    for e in range(3):
        for p in range(4):
            b = 16 * e + 4 * p
            A(f'ds_read_b128 v[{b}:{b + 3}], v{T0} offset:{p * 12288 + e * 1024}')
    A('s_waitcnt lgkmcnt(0)')
    for e in range(3):
        b = 16 * e
        for h in (0, 2):
            A(f'v_pk_add_f32 v[{b + h}:{b + h + 1}], v[{b + h}:{b + h + 1}], v[{b + 4 + h}:{b + 5 + h}]')
            A(f'v_pk_add_f32 v[{b + 8 + h}:{b + 9 + h}], v[{b + 8 + h}:{b + 9 + h}], v[{b + 12 + h}:{b + 13 + h}]')
        for h in (0, 2):
            A(f'v_pk_add_f32 v[{b + h}:{b + h + 1}], v[{b + h}:{b + h + 1}], v[{b + 8 + h}:{b + 9 + h}]')
        A(f'buffer_store_dwordx4 v[{b}:{b + 3}], v{vL16}, s[40:43], s96 offen offset:{e * 1024}{ST}')
```

```python
from asmlib import Asm
from gen_k1b import WS_A, WS_Q, WS_KV, WS_G, WS_FLAG, WS_BYTES, f2u, LOG2E, ts_stamp, ts_store

AUX_LDS = 131072
K3_LDS = AUX_LDS + 8192
DPP = ' row_mask:0xf bank_mask:0xf'
NV = 168


class VM:
    def __init__(self):
        self.n = 0
        self.pos = {}

    def issue(self, tag=None):
        self.n += 1
        if tag is not None:
            self.pos[tag] = self.n

    def cnt(self, tag):
        return self.n - self.pos[tag]


def gen_k3(name, opts=None):
    opts = opts or {}
    D = int(opts.get('D', 7))
    NV = 168 if D <= 7 else 256
    A = Asm()
    A.raw(f'.globl {name}\n.p2align 8\n.type {name},@function\n{name}:')
    A('s_cmp_ge_u32 s2, 256')
    A(f's_cbranch_scc1 {name}_end')
    ts_stamp(A, opts, 64)
    A('s_load_dwordx2 s[4:5], s[0:1], 24')
    A('s_load_dwordx2 s[6:7], s[0:1], 56')
    A('s_load_dwordx2 s[8:9], s[0:1], 72')
    A('s_load_dwordx2 s[10:11], s[0:1], 88')
    A('s_load_dwordx2 s[12:13], s[0:1], 0')
    A('s_load_dwordx2 s[14:15], s[0:1], 16')
    A('s_load_dwordx2 s[28:29], s[0:1], 64')
    A('v_lshrrev_b32 v1, 6, v0')
    A('v_and_b32 v0, 63, v0')
    A('v_readfirstlane_b32 s87, v1')
    A('s_waitcnt lgkmcnt(0)')
    A(f's_mov_b32 s40, s10\ns_mov_b32 s41, s11\ns_mov_b32 s42, {WS_BYTES}\ns_mov_b32 s43, 0x00020000')
    A('s_cmp_ge_u32 s87, 8')
    A(f's_cbranch_scc1 {name}_aux')
    A('s_and_b32 s90, s2, 7')
    A('s_lshr_b32 s91, s2, 3')
    A('s_lshr_b32 s92, s90, 1')
    A('s_lshl_b32 s92, s92, 2')
    A('s_and_b32 s93, s91, 3')
    A('s_add_u32 s86, s92, s93')
    A('s_and_b32 s92, s90, 1')
    A('s_lshl_b32 s92, s92, 3')
    A('s_lshr_b32 s93, s91, 2')
    A('s_add_u32 s85, s92, s93')
    if opts.get('map16'):
        A('s_and_b32 s85, s91, 15')
        A('s_lshr_b32 s93, s91, 4')
        A('s_lshl_b32 s86, s90, 1')
        A('s_add_u32 s86, s86, s93')
    A('s_and_b32 s88, s87, 3')
    A('s_lshr_b32 s89, s87, 2')
    A('s_mov_b32 s16, s6\ns_mov_b32 s17, s7\ns_mov_b32 s18, %d\ns_mov_b32 s19, 0x00020000' % (3584 * 2048))
    A('s_mov_b32 s20, s4\ns_mov_b32 s21, s5\ns_mov_b32 s22, %d\ns_mov_b32 s23, 0x00020000' % (1024 * 2048))
    A('s_mov_b32 s24, s8\ns_mov_b32 s25, s9\ns_mov_b32 s26, 0x400000\ns_mov_b32 s27, 0x00020000')
    accB, accA = 0, 32
    vB = 64
    vA = 96
    misc = vA + D * 8
    vL16, vDW, vG, vPoll, vGo = misc, misc + 1, misc + 2, misc + 3, misc + 4
    vOut = misc + 5
    vRB = misc + 8
    assert misc + 16 <= NV
    A(f'v_lshlrev_b32 v{vL16}, 4, v0')
    A('v_lshrrev_b32 v2, 3, v0')
    A('v_and_b32 v3, 6, v2')
    A('v_and_b32 v4, 7, v0')
    A('v_xor_b32 v4, v4, v3')
    A('v_lshlrev_b32 v4, 4, v4')
    A('v_lshl_add_u32 v4, v2, 11, v4')
    A('s_lshl_b32 s90, s85, 7')
    A(f'v_add_u32 v{vDW}, s90, v4')
    A('s_lshl_b32 s48, s87, 14')
    A('s_lshl_b32 s62, s87, 10')
    A('v_lshrrev_b32 v2, 2, v0')
    A('v_lshrrev_b32 v3, 1, v2')
    A('v_and_b32 v3, 3, v3')
    A('v_and_b32 v4, 3, v0')
    A('v_lshlrev_b32 v4, 3, v4')
    A('v_lshl_add_u32 v4, v2, 7, v4')
    A('s_lshl_b32 s91, s89, 12')
    A('v_add_u32 v4, s91, v4')
    for T in range(4):
        A(f'v_xor_b32 v5, {T}, v3')
        A(f'v_lshl_add_u32 v{vRB + T}, v5, 5, v4')
        A(f'v_add_u32 v{vRB + 4 + T}, 0x10000, v{vRB + T}')
    A('s_lshl_b32 s92, s86, 3')
    A('s_lshl_b32 s93, s88, 1')
    A('s_add_u32 s92, s92, s93')
    A('s_add_u32 s94, s92, s89')
    A('s_xor_b32 s95, s94, 1')
    A('s_lshl_b32 s93, s89, 10')
    A('s_mul_i32 s50, s94, 147456')
    A('s_add_u32 s50, s50, s93')
    A('s_mul_i32 s51, s95, 147456')
    A('s_add_u32 s51, s51, s93')
    A('v_and_b32 v2, 15, v0')
    A(f'v_lshlrev_b32 v{vGo}, 2, v2')
    A('s_lshl_b32 s52, s94, 6')
    A(f's_add_u32 s52, s52, {WS_G}')
    A('s_lshr_b32 s53, s86, 1')
    A('s_lshl_b32 s53, s53, 7')
    A(f's_add_u32 s53, s53, {WS_FLAG}')
    A('v_lshrrev_b32 v3, 4, v0')
    A('v_lshlrev_b32 v3, 3, v3')
    A('v_lshl_add_u32 v3, v2, 11, v3')
    A('s_lshl_b32 s93, s94, 15')
    A('s_add_u32 s93, s93, s90')
    A(f'v_add_u32 v{vOut}, s93, v3')
    vm = VM()
    NST = 18
    NN = 72

    def dma_stage(s):
        srd = 's[16:19]' if s < 14 else 's[20:23]'
        ops = []
        for i in range(4):
            o = []
            if s == 14 and i == 0:
                o.append('s_lshl_b32 s48, s87, 14')
            o += [f's_add_u32 m0, s62, {(s % 4) * 32768 + i * 8192}',
                  f'buffer_load_dwordx4 v{vDW}, {srd}, s48 offen lds',
                  f's_add_u32 s48, s48, {64 * 2048}']
            ops.append(o)
        return ops

    def a_load(n):
        r = vA + (n % D) * 8
        md = ' sc1' if n >= 56 else ''
        return [f'buffer_load_dwordx4 v[{r}:{r + 3}], v{vL16}, s[40:43], s50 offen{md}',
                f'buffer_load_dwordx4 v[{r + 4}:{r + 7}], v{vL16}, s[40:43], s51 offen{md}',
                's_add_u32 s50, s50, 2048', 's_add_u32 s51, s51, 2048']

    def b_reads(n):
        s, p = n >> 2, n & 3
        slot = s % 4
        out = []
        for T in range(4):
            for a in range(2):
                r = vB + (n & 1) * 16 + T * 4 + 2 * a
                base = vRB + T + (4 if slot >= 2 else 0)
                off = (slot & 1) * 32768 + p * 8192 + a * 2048
                out.append(f'ds_read_b64_tr_b16 v[{r}:{r + 1}], v{base} offset:{off}')
        return out

    def E(r):
        if opts.get('k3_no_mfma') and r.startswith('v_mfma'):
            return
        if opts.get('k3_no_a') and r.startswith('buffer_load_dwordx4') and 's[40:43]' in r:
            r = r.replace('s50', '0').replace('s51', '0')
        if opts.get('k3_no_w') and r.startswith('buffer_load') and ' lds' in r:
            r = r.replace('s48', '0')
        A(r)

    for s in range(4):
        for o in dma_stage(s):
            for ins in o:
                E(ins)
            vm.issue(('W', s))
        if s == 0:
            for n in range(4):
                for ins in a_load(n):
                    E(ins)
                vm.issue(); vm.issue(('A', n))
        if s == 1:
            for n in range(4, D):
                for ins in a_load(n):
                    E(ins)
                vm.issue(); vm.issue(('A', n))
    A(f's_waitcnt vmcnt({vm.cnt(("W", 0))})')
    A('s_barrier')
    ts_stamp(A, opts, 65)
    for ins in b_reads(0):
        A(ins)
    NPOLL = 40
    for n in range(NN):
        s, p = n >> 2, n & 3
        last = p == 3
        w = vm.cnt(('A', n))
        if last and s + 1 < NST:
            w = min(w, vm.cnt(('W', s + 1)))
        if n == 47:
            w = min(w, vm.cnt('poll'))
        A(f's_waitcnt vmcnt({min(w, 63)}) lgkmcnt(0)')
        if n == 24:
            ts_stamp(A, opts, 66)
        if n == 48:
            ts_stamp(A, opts, 67)
        if n == 47 and not opts.get('no_aux'):
            A(f'v_readfirstlane_b32 s90, v{vPoll}')
            A('s_cmp_ge_u32 s90, 128')
            A(f's_cbranch_scc1 {name}_rdy')
            A('s_mov_b32 s91, 200000')
            A.label(f'{name}_spin')
            A('s_sleep 4')
            A(f'buffer_load_dword v{vPoll}, v{vGo}, s[40:43], s53 offen sc1')
            A('s_waitcnt vmcnt(0)')
            A(f'v_readfirstlane_b32 s90, v{vPoll}')
            A('s_cmp_ge_u32 s90, 128')
            A(f's_cbranch_scc1 {name}_rdy')
            A('s_sub_u32 s91, s91, 1')
            A('s_cmp_lg_u32 s91, 0')
            A(f's_cbranch_scc1 {name}_spin')
            A.label(f'{name}_rdy')
        if last and s + 1 < NST:
            A('s_barrier')
        fill = [[] for _ in range(8)]
        if n + 1 < NN:
            for i, ins in enumerate(b_reads(n + 1)):
                fill[i // 2].append(ins)
        dm = []
        if last and s + 4 < NST:
            dm = dma_stage(s + 4)
        if n == NPOLL:
            A(f'buffer_load_dword v{vPoll}, v{vGo}, s[40:43], s53 offen sc1')
            vm.issue('poll')
        if n == 48:
            A(f'buffer_load_dword v{vG}, v{vGo}, s[40:43], s52 offen sc1')
            vm.issue('g')
        accb = accB if n < 56 else accA
        first = n in (0, 56)
        ar = vA + (n % D) * 8
        i = 0
        for T in range(4):
            b = vB + (n & 1) * 16 + T * 4
            for u in range(2):
                c = accb + (u * 4 + T) * 4
                cin = '0' if first else f'v[{c}:{c + 3}]'
                E(f'v_mfma_f32_16x16x32_bf16 v[{c}:{c + 3}], v[{b}:{b + 3}], v[{ar + 4 * u}:{ar + 4 * u + 3}], {cin}')
                for ins in fill[i]:
                    E(ins)
                if i >= 4 and i - 4 < len(dm):
                    for ins in dm[i - 4]:
                        E(ins)
                    vm.issue(('W', s + 4))
                i += 1
        if n + D < NN:
            for ins in a_load(n + D):
                E(ins)
            vm.issue(); vm.issue(('A', n + D))
    ts_stamp(A, opts, 68)
    A('s_lshl_b32 s90, s87, 13')
    A('s_add_u32 s90, s90, 65536')
    A(f'v_add_u32 v{vB}, s90, v{vL16}')
    A('s_xor_b32 s90, s90, 32768')
    A(f'v_add_u32 v{vB + 1}, s90, v{vL16}')
    for T in range(4):
        A(f'ds_write_b128 v{vB}, v[{accB + 16 + 4 * T}:{accB + 19 + 4 * T}] offset:{T * 1024}')
        A(f'ds_write_b128 v{vB}, v[{accA + 16 + 4 * T}:{accA + 19 + 4 * T}] offset:{4096 + T * 1024}')
    A('s_waitcnt lgkmcnt(0)')
    A('s_barrier')
    for i in range(8):
        A(f'ds_read_b128 v[{vA + 4 * i}:{vA + 4 * i + 3}], v{vB + 1} offset:{i * 1024}')
    A('s_waitcnt vmcnt(0) lgkmcnt(0)')
    t0, t1 = vB + 2, vB + 3
    omg = vB + 4
    g = vG
    A(f'v_sub_f32 v{omg}, 1.0, v{g}')
    A(f'v_cvt_pk_bf16_f32 v{omg}, v{omg}, v{omg}')
    A(f'v_lshlrev_b32 v{omg}, 16, v{omg}')
    for T in range(4):
        cb = accB + T * 4
        ca = accA + T * 4
        for h in (0, 2):
            A(f'v_pk_add_f32 v[{cb + h}:{cb + h + 1}], v[{cb + h}:{cb + h + 1}], v[{vA + 4 * T + h}:{vA + 4 * T + h + 1}]')
            A(f'v_pk_add_f32 v[{ca + h}:{ca + h + 1}], v[{ca + h}:{ca + h + 1}], v[{vA + 16 + 4 * T + h}:{vA + 16 + 4 * T + h + 1}]')
        for (c, sc) in ((cb, omg), (ca, g)):
            A(f'v_cvt_pk_bf16_f32 v{t0}, v{c}, v{c + 1}')
            A(f'v_cvt_pk_bf16_f32 v{t1}, v{c + 2}, v{c + 3}')
            A(f'v_lshlrev_b32 v{c}, 16, v{t0}')
            A(f'v_and_b32 v{c + 1}, 0xffff0000, v{t0}')
            A(f'v_lshlrev_b32 v{c + 2}, 16, v{t1}')
            A(f'v_and_b32 v{c + 3}, 0xffff0000, v{t1}')
            for r in range(4):
                A(f'v_mul_f32 v{c + r}, v{sc}, v{c + r}')
            A(f'v_cvt_pk_bf16_f32 v{t0}, v{c}, v{c + 1}')
            A(f'v_cvt_pk_bf16_f32 v{t1}, v{c + 2}, v{c + 3}')
            A(f'v_lshlrev_b32 v{c}, 16, v{t0}')
            A(f'v_and_b32 v{c + 1}, 0xffff0000, v{t0}')
            A(f'v_lshlrev_b32 v{c + 2}, 16, v{t1}')
            A(f'v_and_b32 v{c + 3}, 0xffff0000, v{t1}')
        for r in range(4):
            A(f'v_add_f32 v{cb + r}, v{cb + r}, v{ca + r}')
        A(f'v_cvt_pk_bf16_f32 v{cb}, v{cb}, v{cb + 1}')
        A(f'v_cvt_pk_bf16_f32 v{cb + 1}, v{cb + 2}, v{cb + 3}')
        A(f'buffer_store_dwordx2 v[{cb}:{cb + 1}], v{vOut}, s[24:27], 0 offen offset:{T * 32}')
    ts_store(A, opts, 1, [65, 66, 67, 68, 59, 60] if opts.get('clk3') else [64, 65, 66, 67, 68])
    if opts.get('clk3'):
        A('v_mov_b32 v0, s61\nv_mov_b32 v1, s69\nbuffer_store_dwordx2 v[0:1], v8, s[40:43], s3 offen offset:24')
    A('s_endpgm')

    A.label(f'{name}_aux')
    if opts.get('no_aux'):
        A('s_endpgm')
    A('s_sub_u32 s87, s87, 8')
    A('s_and_b32 s85, s2, 31')
    A('s_lshr_b32 s86, s2, 5')
    A('s_mov_b32 s16, s12\ns_mov_b32 s17, s13\ns_mov_b32 s18, 0x400000\ns_mov_b32 s19, 0x00020000')
    A('s_mov_b32 s20, s28\ns_mov_b32 s21, s29\ns_mov_b32 s22, 2048\ns_mov_b32 s23, 0x00020000')
    A('s_mov_b32 s44, s14\ns_mov_b32 s45, s15\ns_mov_b32 s46, 65536\ns_mov_b32 s47, 0x00020000')
    A('v_lshlrev_b32 v1, 4, v0')
    KP = 64
    A('s_mul_i32 s90, s85, 98304')
    A('s_mul_i32 s91, s87, 3072')
    A('s_add_u32 s90, s90, s91')
    A(f's_add_u32 s90, s90, {WS_KV}')
    for p in range(8):
        for e in range(3):
            A(f'buffer_load_dwordx4 v[{KP + (p * 3 + e) * 4}:{KP + 3 + (p * 3 + e) * 4}], v1, s[40:43], s90 offen offset:{e * 1024}')
        if p < 7:
            A('s_add_u32 s90, s90, 12288')
    A('v_and_b32 v2, 15, v0')
    A('v_lshrrev_b32 v3, 4, v0')
    A('v_lshlrev_b32 v4, 8, v3')
    A('v_lshl_add_u32 v4, v2, 1, v4')
    A('s_lshl_b32 s91, s85, 11')
    for ft in range(2):
        for jj in range(8):
            d = 16 * (jj >> 2) + (jj & 3)
            A(f'buffer_load_ushort v{20 + ft * 8 + jj}, v4, s[44:47], s91 offen offset:{d * 64 + ft * 32}')
    A('s_lshl_b32 s92, s86, 4')
    A('s_lshl_b32 s93, s87, 2')
    A('s_add_u32 s92, s92, s93')
    A('s_lshl_b32 s93, s85, 7')
    A('s_add_u32 s93, s93, s92')
    A('s_lshl_b32 s93, s93, 10')
    A(f's_add_u32 s93, s93, {WS_Q}')
    for t in range(4):
        A(f'buffer_load_dwordx4 v[{40 + 4 * t}:{43 + 4 * t}], v1, s[40:43], s93 offen offset:{t * 1024}')
    A('s_barrier')
    A('s_barrier')
    A('s_waitcnt vmcnt(20)')
    for p in range(1, 8):
        for i in range(0, 12, 2):
            A(f'v_pk_add_f32 v[{KP + i}:{KP + i + 1}], v[{KP + i}:{KP + i + 1}], v[{KP + p * 12 + i}:{KP + p * 12 + i + 1}]')
    for e in range(3):
        A(f'v_cvt_pk_bf16_f32 v{KP + 4 * e}, v{KP + 4 * e}, v{KP + 1 + 4 * e}')
        A(f'v_cvt_pk_bf16_f32 v{KP + 1 + 4 * e}, v{KP + 2 + 4 * e}, v{KP + 3 + 4 * e}')
    A('s_lshr_b32 s90, s87, 1')
    A('s_lshl_b32 s90, s90, 10')
    A('s_and_b32 s91, s87, 1')
    A('s_lshl_b32 s91, s91, 3')
    A('s_add_u32 s90, s90, s91')
    A(f's_add_u32 s90, s90, {AUX_LDS}')
    A('v_add_u32 v5, s90, v1')
    for e in range(3):
        A(f'ds_write_b64 v5, v[{KP + 4 * e}:{KP + 1 + 4 * e}] offset:{e * 2048}')
    A('s_lshl_b32 s94, s86, 8')
    A('s_lshl_b32 s95, s85, 3')
    A('s_add_u32 s94, s94, s95')
    A('s_lshl_b32 s95, s87, 1')
    A('s_add_u32 s94, s94, s95')
    A('s_lshl_b32 s95, s94, 11')
    XR, GR = 100, 116
    for e in range(2):
        for hf in range(2):
            A(f'buffer_load_dwordx4 v[{XR + (e * 2 + hf) * 4}:{XR + 3 + (e * 2 + hf) * 4}], v1, s[16:19], s95 offen offset:{e * 2048 + hf * 1024}')
    for hf in range(2):
        A(f'buffer_load_dwordx4 v[{GR + hf * 4}:{GR + 3 + hf * 4}], v1, s[20:23], 0 offen offset:{hf * 1024}')
    A('s_waitcnt lgkmcnt(0)')
    A('s_barrier')
    ts_stamp(A, opts, 65)
    KF = 76
    A(f'v_add_u32 v5, {AUX_LDS}, v1')
    for i in range(6):
        A(f'ds_read_b128 v[{KF + 4 * i}:{KF + 3 + 4 * i}], v5 offset:{i * 1024}')
    A('s_waitcnt vmcnt(6)')
    for i in range(8):
        A(f'v_lshl_or_b32 v{10 + i}, v{21 + 2 * i}, 16, v{20 + 2 * i}')
    A(f's_mov_b32 s96, {f2u(LOG2E)}')
    A(f's_mov_b32 s97, {f2u(LOG2E)}')
    A('s_mul_i32 s98, s92, 147456')
    A('s_add_u32 s95, s85, 112')
    A('s_lshl_b32 s95, s95, 10')
    A('s_add_u32 s98, s98, s95')
    PB = 124
    for t in range(4):
        q = 40 + 4 * t
        P = PB + 8 * t
        A(f'v_mfma_f32_16x16x32_bf16 v[{P}:{P + 3}], v[10:13], v[{q}:{q + 3}], 0')
        A(f'v_mfma_f32_16x16x32_bf16 v[{P + 4}:{P + 7}], v[14:17], v[{q}:{q + 3}], 0')
    A('s_waitcnt lgkmcnt(0)')
    order = [3, 2, 1, 0] if opts.get('rev') else [0, 1, 2, 3]
    if opts.get('rev'):
        A(f's_add_u32 s98, s98, {3 * 147456}')
    for t in order:
        P0 = PB + 8 * t
        P = [P0 + i for i in range(8)]
        ep, en = (20, 28) if t % 2 == 0 else (56, 64 - 0)
        if t % 2 == 1:
            ep, en = 56, 36
            en = 156
        mx, mn, tm, tn = (6, 7, 8, 9) if t % 2 == 0 else (2, 3, 4, 5)
        for i in range(0, 8, 2):
            A(f'v_cvt_pk_bf16_f32 v{ep + i}, v{P[i]}, v{P[i + 1]}')
        for i in range(0, 8, 2):
            A(f'v_lshlrev_b32 v{P[i]}, 16, v{ep + i}')
            A(f'v_and_b32 v{P[i + 1]}, 0xffff0000, v{ep + i}')
        A(f'v_max3_f32 v{mx}, v{P[0]}, v{P[1]}, v{P[2]}')
        A(f'v_min3_f32 v{mn}, v{P[0]}, v{P[1]}, v{P[2]}')
        A(f'v_max3_f32 v{mx}, v{mx}, v{P[3]}, v{P[4]}')
        A(f'v_min3_f32 v{mn}, v{mn}, v{P[3]}, v{P[4]}')
        A(f'v_max3_f32 v{mx}, v{mx}, v{P[5]}, v{P[6]}')
        A(f'v_min3_f32 v{mn}, v{mn}, v{P[5]}, v{P[6]}')
        A(f'v_max_f32 v{mx}, v{mx}, v{P[7]}')
        A(f'v_min_f32 v{mn}, v{mn}, v{P[7]}')
        for sw in ('v_permlane16_swap_b32', 'v_permlane32_swap_b32'):
            A(f'v_mov_b32 v{tm}, v{mx}')
            A(f'v_mov_b32 v{tn}, v{mn}')
            A(f'{sw} v{mx}, v{tm}')
            A(f'{sw} v{mn}, v{tn}')
            A(f'v_max_f32 v{mx}, v{mx}, v{tm}')
            A(f'v_min_f32 v{mn}, v{mn}, v{tn}')
        A(f'v_mul_f32 v{tm}, s96, v{mn}')
        A(f'v_mul_f32 v{tn}, s96, v{mn}')
        A(f'v_mul_f32 v{mn}, s96, v{mx}')
        A(f'v_mul_f32 v{mx}, s96, v{mx}')
        for h in range(0, 8, 2):
            src = P[h]
            A(f'v_pk_fma_f32 v[{ep + h}:{ep + h + 1}], v[{src}:{src + 1}], s[96:97], v[{mx}:{mn}] neg_lo:[0,0,1] neg_hi:[0,0,1]')
            A(f'v_pk_fma_f32 v[{en + h}:{en + h + 1}], v[{src}:{src + 1}], s[96:97], v[{tm}:{tn}] neg_lo:[1,0,0] neg_hi:[1,0,0]')
        for i in range(8):
            A(f'v_exp_f32 v{ep + i}, v{ep + i}')
            A(f'v_exp_f32 v{en + i}, v{en + i}')
        p0, p1 = P0, P0 + 4
        if opts.get('auxbar') == '2':
            A('s_barrier')
        A(f'v_pk_add_f32 v[{p0}:{p0 + 1}], v[{ep}:{ep + 1}], v[{ep + 2}:{ep + 3}]')
        A(f'v_pk_add_f32 v[{p0 + 2}:{p0 + 3}], v[{ep + 4}:{ep + 5}], v[{ep + 6}:{ep + 7}]')
        A(f'v_pk_add_f32 v[{p1}:{p1 + 1}], v[{en}:{en + 1}], v[{en + 2}:{en + 3}]')
        A(f'v_pk_add_f32 v[{p1 + 2}:{p1 + 3}], v[{en + 4}:{en + 5}], v[{en + 6}:{en + 7}]')
        A(f'v_pk_add_f32 v[{p0}:{p0 + 1}], v[{p0}:{p0 + 1}], v[{p0 + 2}:{p0 + 3}]')
        A(f'v_pk_add_f32 v[{p1}:{p1 + 1}], v[{p1}:{p1 + 1}], v[{p1 + 2}:{p1 + 3}]')
        A(f'v_add_f32 v{mx}, v{p0}, v{p0 + 1}')
        A(f'v_add_f32 v{mn}, v{p1}, v{p1 + 1}')
        for sw in ('v_permlane16_swap_b32', 'v_permlane32_swap_b32'):
            A(f'v_mov_b32 v{tm}, v{mx}')
            A(f'v_mov_b32 v{tn}, v{mn}')
            A(f'{sw} v{mx}, v{tm}')
            A(f'{sw} v{mn}, v{tn}')
            A(f'v_add_f32 v{mx}, v{mx}, v{tm}')
            A(f'v_add_f32 v{mn}, v{mn}, v{tn}')
        A(f'v_rcp_f32 v{tm}, v{mn}')
        A(f'v_rcp_f32 v{tn}, v{mn}')
        A(f'v_rcp_f32 v{mn}, v{mx}')
        A(f'v_rcp_f32 v{mx}, v{mx}')
        for h in range(0, 8, 2):
            A(f'v_pk_mul_f32 v[{ep + h}:{ep + h + 1}], v[{ep + h}:{ep + h + 1}], v[{mx}:{mn}]')
            A(f'v_pk_mul_f32 v[{en + h}:{en + h + 1}], v[{en + h}:{en + h + 1}], v[{tm}:{tn}]')
        for i in range(4):
            A(f'v_cvt_pk_bf16_f32 v{p0 + i}, v{ep + 2 * i}, v{ep + 2 * i + 1}')
            A(f'v_cvt_pk_bf16_f32 v{p1 + i}, v{en + 2 * i}, v{en + 2 * i + 1}')
        dsts = [ep, ep + 4, en]
        for b in range(2):
            for dt in range(3):
                kf = KF + 4 * (dt * 2 + b)
                d = dsts[dt]
                cin = '0' if b == 0 else f'v[{d}:{d + 3}]'
                A(f'v_mfma_f32_16x16x32_bf16 v[{d}:{d + 3}], v[{kf}:{kf + 3}], v[{P0 + 4 * b}:{P0 + 4 * b + 3}], {cin}')
        dn = en + 4
        A(f'v_cvt_pk_bf16_f32 v{dn}, v{en}, v{en}')
        A(f'v_lshlrev_b32 v{dn}, 16, v{dn}')
        A(f'v_add_f32 v{dn}, {f2u(1e-6)}, v{dn}')
        A(f'v_cvt_pk_bf16_f32 v{dn}, v{dn}, v{dn}')
        A(f'v_lshlrev_b32 v{dn}, 16, v{dn}')
        A(f'v_rcp_f32 v{dn}, v{dn}')
        for i in range(0, 8, 2):
            A(f'v_cvt_pk_bf16_f32 v{P[i]}, v{ep + i}, v{ep + i + 1}')
        for i in range(0, 8, 2):
            A(f'v_lshlrev_b32 v{ep + i}, 16, v{P[i]}')
            A(f'v_and_b32 v{ep + i + 1}, 0xffff0000, v{P[i]}')
        for i in range(8):
            A(f'v_mul_f32 v{ep + i}, v{ep + i}, v{dn}')
        for i in range(4):
            A(f'v_cvt_pk_bf16_f32 v{P[i]}, v{ep + 2 * i}, v{ep + 2 * i + 1}')
        A(f'buffer_store_dwordx4 v[{P[0]}:{P[3]}], v1, s[40:43], s98 offen sc1')
        if opts.get('auxbar'):
            A('s_barrier')
        if opts.get('rev'):
            A('s_sub_u32 s98, s98, 147456')
        else:
            A('s_add_u32 s98, s98, 147456')
    ts_stamp(A, opts, 66)
    A('s_waitcnt vmcnt(4)')
    for e in range(2):
        acc = 84 + e
        A(f'v_mov_b32 v{acc}, 0')
        for i in range(8):
            xr, gr = XR + e * 8 + i, GR + i
            A(f'v_lshlrev_b32 v86, 16, v{xr}')
            A(f'v_lshlrev_b32 v87, 16, v{gr}')
            A(f'v_fmac_f32 v{acc}, v86, v87')
            A(f'v_and_b32 v86, 0xffff0000, v{xr}')
            A(f'v_and_b32 v87, 0xffff0000, v{gr}')
            A(f'v_fmac_f32 v{acc}, v86, v87')
    for sh in (8, 4, 2, 1):
        for e in range(2):
            A(f'v_add_f32_dpp v{84 + e}, v{84 + e}, v{84 + e} row_ror:{sh}' + DPP)
    for e in range(2):
        for (sw) in ('v_permlane16_swap_b32', 'v_permlane32_swap_b32'):
            A(f'v_mov_b32 v86, v{84 + e}')
            A(f'{sw} v{84 + e}, v86')
            A(f'v_add_f32 v{84 + e}, v{84 + e}, v86')
    A('v_cvt_pk_bf16_f32 v86, v84, v85')
    A('v_lshlrev_b32 v84, 16, v86')
    A('v_and_b32 v85, 0xffff0000, v86')
    for e in range(2):
        A(f'v_mul_f32 v{84 + e}, {f2u(-LOG2E)}, v{84 + e}')
        A(f'v_exp_f32 v{84 + e}, v{84 + e}')
        A(f'v_add_f32 v{84 + e}, 1.0, v{84 + e}')
        A(f'v_rcp_f32 v{84 + e}, v{84 + e}')
    A('v_cvt_pk_bf16_f32 v86, v84, v85')
    A('v_lshlrev_b32 v84, 16, v86')
    A('v_and_b32 v85, 0xffff0000, v86')
    A('s_lshl_b32 s95, s94, 2')
    A(f's_add_u32 s95, s95, {WS_G}')
    A('v_mov_b32 v86, 0')
    A('v_mov_b32 v87, 1')
    A('s_lshl_b32 s90, s86, 7')
    A(f's_add_u32 s90, s90, {WS_FLAG}')
    A('s_mov_b64 exec, 1')
    A('buffer_store_dwordx2 v[84:85], v86, s[40:43], s95 offen sc1')
    A('s_waitcnt vmcnt(0)')
    A('buffer_atomic_add v87, v86, s[40:43], s90 offen')
    A('s_add_u32 s87, s87, 8')
    ts_store(A, opts, 1, [64, 65, 66, 66, 66])
    A.label(f'{name}_end')
    A('s_endpgm')
    return A.text(), NV, NV
```

```python
from asmlib import Asm
from gen_k1b import WS_A, WS_Q, WS_KV, WS_G, WS_FLAG, WS_P, WS_BYTES, f2u, LOG2E, ts_stamp, ts_store

KVL = 131072
P3_LDS = KVL + 32768
DPP = ' row_mask:0xf bank_mask:0xf'
ACC_OFF = 172


class Cnt:
    def __init__(self):
        self.n = 0
        self.pos = {}

    def issue(self, tag=None):
        self.n += 1
        if tag is not None:
            self.pos[tag] = self.n

    def cnt(self, tag):
        return self.n - self.pos[tag]


def side_stream(name, opts, R):
    S = []
    vL16 = R['vL16']
    LD = ' sc1' if opts.get('fused') else ''
    KV = 64
    WR = 112
    WF = 128
    Q = 136
    T0 = 144
    S += [f'v_lshrrev_b32 v{T0}, 4, v{vL16}',
          f'v_and_b32 v{T0 + 1}, 15, v{T0}',
          f'v_lshrrev_b32 v{T0 + 2}, 4, v{T0}',
          f'v_lshlrev_b32 v{T0 + 2}, 8, v{T0 + 2}',
          f'v_lshl_add_u32 v{T0 + 2}, v{T0 + 1}, 1, v{T0 + 2}',
          f'v_lshlrev_b32 v{T0 + 3}, 3, v{T0}']
    for ft in range(2):
        for jj in range(8):
            d = 16 * (jj >> 2) + (jj & 3)
            S.append(('vm', f'buffer_load_ushort v{WR + ft * 8 + jj}, v{T0 + 2}, s[44:47], s70 offen offset:{d * 64 + ft * 32}', 'wphi'))
    S.append(('kvready',))
    for t in range(2):
        S.append(('vm', f'buffer_load_dwordx4 v[{Q + 4 * t}:{Q + 4 * t + 3}], v{vL16}, s[40:43], s71 offen offset:{t * 1024}{LD}', 'q'))
    for p in range(8):
        S.append(('vm', f'buffer_load_dwordx4 v[{KV + 6 * p}:{KV + 6 * p + 3}], v{vL16}, s[40:43], s72 offen{LD}', None))
        S.append(('vm', f'buffer_load_dwordx2 v[{KV + 6 * p + 4}:{KV + 6 * p + 5}], v{T0 + 3}, s[40:43], s73 offen{LD}', ('kv', p)))
        if p < 7:
            S += ['s_add_u32 s72, s72, 12288', 's_add_u32 s73, s73, 12288']
    S += [f'v_add_u32 v{T0 + 4}, s74, v{vL16}',
          f'v_lshrrev_b32 v{T0 + 5}, 1, v{T0}',
          f'v_lshlrev_b32 v{T0 + 5}, 4, v{T0 + 5}',
          f'v_and_b32 v{T0 + 6}, 1, v{T0}',
          f'v_lshl_add_u32 v{T0 + 5}, v{T0 + 6}, 2, v{T0 + 5}',
          f'v_add_u32 v{T0 + 5}, s75, v{T0 + 5}',
          f'v_add_u32 v{T0 + 6}, {KVL}, v{vL16}']
    S.append(('delay', 4))
    S.append(('wvm', 'q'))
    for i in range(8):
        S.append(f'v_lshl_or_b32 v{WF + i}, v{WR + 1 + 2 * i}, 16, v{WR + 2 * i}')
    PB = WR
    for t in range(2):
        q = Q + 4 * t
        P = PB + 8 * t
        S.append(f'v_mfma_f32_16x16x32_bf16 v[{P}:{P + 3}], v[{WF}:{WF + 3}], v[{q}:{q + 3}], 0')
        S.append(f'v_mfma_f32_16x16x32_bf16 v[{P + 4}:{P + 7}], v[{WF + 4}:{WF + 7}], v[{q}:{q + 3}], 0')
    for p in range(1, 8):
        S.append(('wvm', ('kv', p)))
        for i in range(0, 6, 2):
            S.append(f'v_pk_add_f32 v[{KV + i}:{KV + i + 1}], v[{KV + i}:{KV + i + 1}], v[{KV + 6 * p + i}:{KV + 6 * p + i + 1}]')
    S += [f'v_cvt_pk_bf16_f32 v{KV}, v{KV}, v{KV + 1}',
          f'v_cvt_pk_bf16_f32 v{KV + 1}, v{KV + 2}, v{KV + 3}',
          f'v_cvt_pk_bf16_f32 v{KV + 2}, v{KV + 4}, v{KV + 5}']
    S.append(('lg', f'ds_write_b64 v{T0 + 4}, v[{KV}:{KV + 1}]', None))
    S.append(('lg', f'ds_write_b32 v{T0 + 5}, v{KV + 2}', None))
    S.append(('markbar',))
    XR, GR = 128, 136
    for hf in range(2):
        S.append(('vm', f'buffer_load_dwordx4 v[{XR + 4 * hf}:{XR + 4 * hf + 3}], v{vL16}, s[28:31], s76 offen offset:{hf * 1024}', None))
    for hf in range(2):
        S.append(('vm', f'buffer_load_dwordx4 v[{GR + 4 * hf}:{GR + 4 * hf + 3}], v{vL16}, s[32:35], 0 offen offset:{hf * 1024}', 'gate'))
    ep, en = 68, 76
    mx, mn, tm, tn = T0, T0 + 1, T0 + 2, T0 + 3
    for t in range(2):
        P0 = PB + 8 * t
        P = [P0 + i for i in range(8)]
        for i in range(0, 8, 2):
            S.append(f'v_cvt_pk_bf16_f32 v{ep + i}, v{P[i]}, v{P[i + 1]}')
        for i in range(0, 8, 2):
            S.append(f'v_lshlrev_b32 v{P[i]}, 16, v{ep + i}')
            S.append(f'v_and_b32 v{P[i + 1]}, 0xffff0000, v{ep + i}')
        S += [f'v_max3_f32 v{mx}, v{P[0]}, v{P[1]}, v{P[2]}',
              f'v_min3_f32 v{mn}, v{P[0]}, v{P[1]}, v{P[2]}',
              f'v_max3_f32 v{mx}, v{mx}, v{P[3]}, v{P[4]}',
              f'v_min3_f32 v{mn}, v{mn}, v{P[3]}, v{P[4]}',
              f'v_max3_f32 v{mx}, v{mx}, v{P[5]}, v{P[6]}',
              f'v_min3_f32 v{mn}, v{mn}, v{P[5]}, v{P[6]}',
              f'v_max_f32 v{mx}, v{mx}, v{P[7]}',
              f'v_min_f32 v{mn}, v{mn}, v{P[7]}']
        for sw in ('v_permlane16_swap_b32', 'v_permlane32_swap_b32'):
            S += [f'v_mov_b32 v{tm}, v{mx}', f'v_mov_b32 v{tn}, v{mn}',
                  f'{sw} v{mx}, v{tm}', f'{sw} v{mn}, v{tn}',
                  f'v_max_f32 v{mx}, v{mx}, v{tm}', f'v_min_f32 v{mn}, v{mn}, v{tn}']
        S += [f'v_mul_f32 v{tm}, s96, v{mn}', f'v_mul_f32 v{tn}, s96, v{mn}',
              f'v_mul_f32 v{mn}, s96, v{mx}', f'v_mul_f32 v{mx}, s96, v{mx}']
        for h in range(0, 8, 2):
            src = P[h]
            S.append(f'v_pk_fma_f32 v[{ep + h}:{ep + h + 1}], v[{src}:{src + 1}], s[96:97], v[{mx}:{mn}] neg_lo:[0,0,1] neg_hi:[0,0,1]')
            S.append(f'v_pk_fma_f32 v[{en + h}:{en + h + 1}], v[{src}:{src + 1}], s[96:97], v[{tm}:{tn}] neg_lo:[1,0,0] neg_hi:[1,0,0]')
        for i in range(8):
            S.append(f'v_exp_f32 v{ep + i}, v{ep + i}')
            S.append(f'v_exp_f32 v{en + i}, v{en + i}')
        p0, p1 = P0, P0 + 4
        S += [f'v_pk_add_f32 v[{p0}:{p0 + 1}], v[{ep}:{ep + 1}], v[{ep + 2}:{ep + 3}]',
              f'v_pk_add_f32 v[{p0 + 2}:{p0 + 3}], v[{ep + 4}:{ep + 5}], v[{ep + 6}:{ep + 7}]',
              f'v_pk_add_f32 v[{p1}:{p1 + 1}], v[{en}:{en + 1}], v[{en + 2}:{en + 3}]',
              f'v_pk_add_f32 v[{p1 + 2}:{p1 + 3}], v[{en + 4}:{en + 5}], v[{en + 6}:{en + 7}]',
              f'v_pk_add_f32 v[{p0}:{p0 + 1}], v[{p0}:{p0 + 1}], v[{p0 + 2}:{p0 + 3}]',
              f'v_pk_add_f32 v[{p1}:{p1 + 1}], v[{p1}:{p1 + 1}], v[{p1 + 2}:{p1 + 3}]',
              f'v_add_f32 v{mx}, v{p0}, v{p0 + 1}',
              f'v_add_f32 v{mn}, v{p1}, v{p1 + 1}']
        for sw in ('v_permlane16_swap_b32', 'v_permlane32_swap_b32'):
            S += [f'v_mov_b32 v{tm}, v{mx}', f'v_mov_b32 v{tn}, v{mn}',
                  f'{sw} v{mx}, v{tm}', f'{sw} v{mn}, v{tn}',
                  f'v_add_f32 v{mx}, v{mx}, v{tm}', f'v_add_f32 v{mn}, v{mn}, v{tn}']
        S += [f'v_rcp_f32 v{tm}, v{mn}', f'v_rcp_f32 v{tn}, v{mn}',
              f'v_rcp_f32 v{mn}, v{mx}', f'v_rcp_f32 v{mx}, v{mx}']
        for h in range(0, 8, 2):
            S.append(f'v_pk_mul_f32 v[{ep + h}:{ep + h + 1}], v[{ep + h}:{ep + h + 1}], v[{mx}:{mn}]')
            S.append(f'v_pk_mul_f32 v[{en + h}:{en + h + 1}], v[{en + h}:{en + h + 1}], v[{tm}:{tn}]')
        for i in range(4):
            S.append(f'v_cvt_pk_bf16_f32 v{p0 + i}, v{ep + 2 * i}, v{ep + 2 * i + 1}')
            S.append(f'v_cvt_pk_bf16_f32 v{p1 + i}, v{en + 2 * i}, v{en + 2 * i + 1}')
    KF = 88
    S.append(('waitbar',))
    for i in range(6):
        S.append(('lg', f'ds_read_b128 v[{KF + 4 * i}:{KF + 3 + 4 * i}], v{T0 + 6} offset:{i * 1024}', 'kf'))
    S.append(('wvm', 'gate'))
    ga, g1, g2 = T0 + 8, T0 + 9, T0 + 10
    S.append(f'v_mov_b32 v{ga}, 0')
    for i in range(8):
        xr, gr = XR + i, GR + i
        S += [f'v_lshlrev_b32 v{g1}, 16, v{xr}', f'v_lshlrev_b32 v{g2}, 16, v{gr}', f'v_fmac_f32 v{ga}, v{g1}, v{g2}',
              f'v_and_b32 v{g1}, 0xffff0000, v{xr}', f'v_and_b32 v{g2}, 0xffff0000, v{gr}', f'v_fmac_f32 v{ga}, v{g1}, v{g2}']
    S.append(('wlg', 'kf'))
    for t in range(2):
        P0 = PB + 8 * t
        nb = 64 + 12 * t
        for b in range(2):
            for dt in range(3):
                kf = KF + 4 * (dt * 2 + b)
                d = nb + 4 * dt
                cin = '0' if b == 0 else f'v[{d}:{d + 3}]'
                S.append(f'v_mfma_f32_16x16x32_bf16 v[{d}:{d + 3}], v[{kf}:{kf + 3}], v[{P0 + 4 * b}:{P0 + 4 * b + 3}], {cin}')
    for sh in (8, 4, 2, 1):
        S.append(f'v_add_f32_dpp v{ga}, v{ga}, v{ga} row_ror:{sh}' + DPP)
    for sw in ('v_permlane16_swap_b32', 'v_permlane32_swap_b32'):
        S += [f'v_mov_b32 v{g1}, v{ga}', f'{sw} v{ga}, v{g1}', f'v_add_f32 v{ga}, v{ga}, v{g1}']
    S += [f'v_cvt_pk_bf16_f32 v{ga}, v{ga}, v{ga}',
          f'v_lshlrev_b32 v{ga}, 16, v{ga}',
          f'v_mul_f32 v{ga}, {f2u(-LOG2E)}, v{ga}',
          f'v_exp_f32 v{ga}, v{ga}',
          f'v_add_f32 v{ga}, 1.0, v{ga}',
          f'v_rcp_f32 v{ga}, v{ga}',
          f'v_cvt_pk_bf16_f32 v{ga}, v{ga}, v{ga}',
          f'v_lshlrev_b32 v{ga}, 16, v{ga}',
          f'v_mov_b32 v{g1}, 0']
    S.append(('vmx', ['s_mov_b64 exec, 1', f'buffer_store_dword v{ga}, v{g1}, s[40:43], s77 offen sc1', 's_mov_b64 exec, -1'], None))
    for t in range(2):
        P0 = PB + 8 * t
        P = [P0 + i for i in range(8)]
        nb = 64 + 12 * t
        dn = nb + 9
        S += [f'v_cvt_pk_bf16_f32 v{dn}, v{nb + 8}, v{nb + 8}',
              f'v_lshlrev_b32 v{dn}, 16, v{dn}',
              f'v_add_f32 v{dn}, {f2u(1e-6)}, v{dn}',
              f'v_cvt_pk_bf16_f32 v{dn}, v{dn}, v{dn}',
              f'v_lshlrev_b32 v{dn}, 16, v{dn}',
              f'v_rcp_f32 v{dn}, v{dn}']
        for i in range(0, 8, 2):
            S.append(f'v_cvt_pk_bf16_f32 v{P[i]}, v{nb + i}, v{nb + i + 1}')
        for i in range(0, 8, 2):
            S.append(f'v_lshlrev_b32 v{nb + i}, 16, v{P[i]}')
            S.append(f'v_and_b32 v{nb + i + 1}, 0xffff0000, v{P[i]}')
        for i in range(8):
            S.append(f'v_mul_f32 v{nb + i}, v{nb + i}, v{dn}')
        for i in range(4):
            S.append(f'v_cvt_pk_bf16_f32 v{P[i]}, v{nb + 2 * i}, v{nb + 2 * i + 1}')
        S.append(('vm', f'buffer_store_dwordx4 v[{P[0]}:{P[3]}], v{vL16}, s[40:43], s78 offen sc1', 'ost'))
        if t == 0:
            S.append('s_add_u32 s78, s78, 147456')
    return S


def gen_k3(name, opts=None):
    opts = opts or {}
    A = Asm()
    A.raw(f'.globl {name}\n.p2align 8\n.type {name},@function\n{name}:')
    A('s_cmp_ge_u32 s2, 256')
    A(f's_cbranch_scc1 {name}_end')
    ts_stamp(A, opts, 64)
    A('s_load_dwordx2 s[4:5], s[0:1], 24')
    A('s_load_dwordx2 s[6:7], s[0:1], 56')
    A('s_load_dwordx2 s[8:9], s[0:1], 72')
    A('s_load_dwordx2 s[10:11], s[0:1], 88')
    A('s_load_dwordx2 s[12:13], s[0:1], 0')
    A('s_load_dwordx2 s[14:15], s[0:1], 16')
    A('s_load_dwordx2 s[36:37], s[0:1], 64')
    A('v_lshrrev_b32 v1, 6, v0')
    A('v_and_b32 v0, 63, v0')
    A('v_readfirstlane_b32 s87, v1')
    A('s_waitcnt lgkmcnt(0)')
    A(f's_mov_b32 s40, s10\ns_mov_b32 s41, s11\ns_mov_b32 s42, {WS_BYTES}\ns_mov_b32 s43, 0x00020000')
    emit_p3(A, name, opts)
    A.label(f'{name}_end')
    A('s_endpgm')
    return A.text(), 256, ACC_OFF


def emit_p3(A, name, opts):
    D = 6
    acc3 = 0
    accA = 64
    misc = 156
    vL16, vDW, vG, vPoll, vGo, vOut, vXW, vXR = [misc + i for i in range(8)]
    vRB = misc + 8
    aA = 0
    aB = 48
    R = dict(vL16=vL16)
    LDA = ' sc1' if opts.get('fused') else ''
    A('s_and_b32 s90, s2, 7')
    A('s_lshr_b32 s91, s2, 3')
    A('s_and_b32 s84, s90, 1')
    A('s_lshr_b32 s92, s90, 1')
    A('s_lshl_b32 s92, s92, 2')
    A('s_and_b32 s93, s91, 3')
    A('s_add_u32 s86, s92, s93')
    A('s_lshr_b32 s85, s91, 2')
    A('s_and_b32 s88, s87, 3')
    A('s_lshr_b32 s89, s87, 2')
    A('s_mov_b32 s16, s6\ns_mov_b32 s17, s7\ns_mov_b32 s18, %d\ns_mov_b32 s19, 0x00020000' % (3584 * 2048))
    A('s_mov_b32 s20, s4\ns_mov_b32 s21, s5\ns_mov_b32 s22, %d\ns_mov_b32 s23, 0x00020000' % (1024 * 2048))
    A('s_mov_b32 s24, s8\ns_mov_b32 s25, s9\ns_mov_b32 s26, 0x400000\ns_mov_b32 s27, 0x00020000')
    A('s_mov_b32 s28, s12\ns_mov_b32 s29, s13\ns_mov_b32 s30, 0x400000\ns_mov_b32 s31, 0x00020000')
    A('s_mov_b32 s32, s36\ns_mov_b32 s33, s37\ns_mov_b32 s34, 2048\ns_mov_b32 s35, 0x00020000')
    A('s_mov_b32 s44, s14\ns_mov_b32 s45, s15\ns_mov_b32 s46, 65536\ns_mov_b32 s47, 0x00020000')
    A(f'v_lshlrev_b32 v{vL16}, 4, v0')
    A('v_lshrrev_b32 v2, 3, v0')
    A('v_and_b32 v3, 6, v2')
    A('v_and_b32 v4, 7, v0')
    A('v_xor_b32 v4, v4, v3')
    A('v_lshlrev_b32 v4, 4, v4')
    A(f'v_lshl_add_u32 v{vDW}, v2, 11, v4')
    A(f's_mul_i32 s48, s84, {1792 * 2048}')
    A('s_lshl_b32 s90, s88, 14')
    A('s_add_u32 s48, s48, s90')
    A('s_lshl_b32 s90, s85, 8')
    A('s_add_u32 s48, s48, s90')
    A('s_xor_b32 s91, s89, s84')
    A('s_lshl_b32 s91, s91, 7')
    A('s_add_u32 s48, s48, s91')
    A('s_lshl_b32 s91, s84, 7')
    A('s_add_u32 s83, s90, s91')
    A('s_lshl_b32 s49, s87, 14')
    A('s_add_u32 s49, s49, s83')
    A('s_lshl_b32 s62, s87, 10')
    A('s_lshl_b32 s92, s86, 3')
    A('s_lshl_b32 s93, s88, 1')
    A('s_add_u32 s92, s92, s93')
    A('s_add_u32 s94, s92, s89')
    A('s_xor_b32 s95, s94, 1')
    A('s_lshl_b32 s93, s89, 10')
    A('s_mul_i32 s54, s94, 147456')
    A('s_add_u32 s54, s54, s93')
    A('s_mul_i32 s55, s95, 147456')
    A('s_add_u32 s55, s55, s93')
    A(f's_mul_i32 s93, s84, {56 * 1024}')
    A('s_add_u32 s50, s54, s93')
    A('s_add_u32 s51, s55, s93')
    A(f's_add_u32 s54, s54, {112 * 1024}')
    A(f's_add_u32 s55, s55, {112 * 1024}')
    vm, lg = Cnt(), Cnt()
    NS3 = 14

    def dma(s, i):
        if s < NS3:
            return [f's_add_u32 m0, s62, {(s % 4) * 32768 + i * 8192}',
                    f'buffer_load_dwordx4 v{vDW}, s[16:19], s48 offen lds',
                    f's_add_u32 s48, s48, {32 * 2048}']
        return [f's_add_u32 m0, s62, {(s % 4) * 32768 + i * 8192}',
                f'buffer_load_dwordx4 v{vDW}, s[20:23], s49 offen lds',
                f's_add_u32 s49, s49, {64 * 2048}']

    def a_load(i):
        r = aA + (i % D) * 8
        if i < 28:
            return [f'buffer_load_dwordx4 a[{r}:{r + 3}], v{vL16}, s[40:43], s50 offen{LDA}',
                    f'buffer_load_dwordx4 a[{r + 4}:{r + 7}], v{vL16}, s[40:43], s51 offen{LDA}',
                    's_add_u32 s50, s50, 2048', 's_add_u32 s51, s51, 2048']
        return [f'buffer_load_dwordx4 a[{r}:{r + 3}], v{vL16}, s[40:43], s54 offen sc1',
                f'buffer_load_dwordx4 a[{r + 4}:{r + 7}], v{vL16}, s[40:43], s55 offen sc1',
                's_add_u32 s54, s54, 2048', 's_add_u32 s55, s55, 2048']

    def E(r):
        if opts.get('k3_no_mfma') and r.startswith('v_mfma'):
            return
        A(r)

    for s in range(4):
        for i in range(4):
            for ins in dma(s, i):
                E(ins)
            vm.issue(('W', s))
        if s < 3:
            for i in range(2 * s, 2 * s + 2):
                for ins in a_load(i):
                    E(ins)
                vm.issue(); vm.issue(('A', i))
    A('v_lshrrev_b32 v2, 2, v0')
    A('v_lshrrev_b32 v3, 1, v2')
    A('v_and_b32 v3, 3, v3')
    A('v_and_b32 v4, 3, v0')
    A('v_lshlrev_b32 v4, 3, v4')
    A('v_lshl_add_u32 v4, v2, 7, v4')
    A('s_lshl_b32 s63, s89, 13')
    A('v_add_u32 v4, s63, v4')
    for T in range(4):
        A(f'v_xor_b32 v5, {T}, v3')
        A(f'v_lshl_add_u32 v{vRB + T}, v5, 5, v4')
        A(f'v_add_u32 v{vRB + 4 + T}, 0x10000, v{vRB + T}')
    A('s_lshl_b32 s63, s89, 12')
    A('s_lshl_b32 s90, s87, 12')
    A(f's_add_u32 s90, s90, {KVL}')
    A(f'v_add_u32 v{vXW}, s90, v{vL16}')
    A('s_xor_b32 s90, s90, 16384')
    A(f'v_add_u32 v{vXR}, s90, v{vL16}')
    A('v_and_b32 v2, 15, v0')
    A(f'v_lshlrev_b32 v{vGo}, 2, v2')
    A('s_lshl_b32 s52, s94, 6')
    A(f's_add_u32 s52, s52, {WS_G}')
    A('s_lshr_b32 s53, s86, 1')
    A('s_lshl_b32 s53, s53, 7')
    A(f's_add_u32 s53, s53, {WS_FLAG}')
    A('s_lshl_b32 s90, s86, 3')
    A('s_add_u32 s90, s90, s85')
    A('s_lshl_b32 s56, s90, 7')
    A(f's_add_u32 s56, s56, {WS_FLAG + 1024}')
    A('s_lshl_b32 s91, s90, 16')
    A(f's_add_u32 s91, s91, {WS_P}')
    A('s_and_b32 s93, s94, 7')
    A('s_lshl_b32 s93, s93, 12')
    A('s_add_u32 s91, s91, s93')
    A('s_lshl_b32 s93, s84, 15')
    A('s_add_u32 s58, s91, s93')
    A('s_xor_b32 s93, s93, 32768')
    A('s_add_u32 s57, s91, s93')
    A('v_lshrrev_b32 v3, 4, v0')
    A('v_lshlrev_b32 v3, 3, v3')
    A('v_lshl_add_u32 v3, v2, 11, v3')
    A('s_lshl_b32 s93, s94, 15')
    A('s_add_u32 s93, s93, s83')
    A(f'v_add_u32 v{vOut}, s93, v3')
    A('s_and_b32 s90, s2, 31')
    A('s_lshr_b32 s91, s2, 5')
    A('s_lshl_b32 s70, s90, 11')
    A('s_lshl_b32 s92, s91, 4')
    A('s_lshl_b32 s93, s87, 1')
    A('s_add_u32 s92, s92, s93')
    A('s_lshl_b32 s71, s90, 7')
    A('s_add_u32 s71, s71, s92')
    A('s_lshl_b32 s71, s71, 10')
    A(f's_add_u32 s71, s71, {WS_Q}')
    A('s_mul_i32 s78, s92, 147456')
    A('s_add_u32 s93, s90, 112')
    A('s_lshl_b32 s93, s93, 10')
    A('s_add_u32 s78, s78, s93')
    A('s_lshr_b32 s92, s87, 1')
    A('s_and_b32 s93, s87, 1')
    A('s_mul_i32 s72, s90, 98304')
    A(f's_add_u32 s72, s72, {WS_KV}')
    A('s_mul_i32 s94, s92, 3072')
    A('s_add_u32 s72, s72, s94')
    A('s_lshl_b32 s94, s93, 9')
    A('s_add_u32 s73, s72, s94')
    A('s_add_u32 s73, s73, 1024')
    A('s_lshl_b32 s94, s93, 11')
    A('s_add_u32 s72, s72, s94')
    A('s_lshr_b32 s94, s92, 1')
    A('s_lshl_b32 s94, s94, 10')
    A('s_and_b32 s95, s92, 1')
    A('s_lshl_b32 s95, s95, 3')
    A('s_add_u32 s94, s94, s95')
    A(f's_add_u32 s94, s94, {KVL}')
    A('s_lshl_b32 s95, s93, 12')
    A('s_add_u32 s74, s94, s95')
    A('s_lshl_b32 s95, s93, 9')
    A('s_add_u32 s75, s94, s95')
    A('s_add_u32 s75, s75, 2048')
    A('s_lshl_b32 s92, s91, 8')
    A('s_lshl_b32 s93, s90, 3')
    A('s_add_u32 s92, s92, s93')
    A('s_add_u32 s92, s92, s87')
    A('s_lshl_b32 s76, s92, 11')
    A('s_lshl_b32 s77, s92, 2')
    A(f's_add_u32 s77, s77, {WS_G}')
    A('s_lshl_b32 s79, s91, 7')
    A('s_lshl_b32 s93, s90, 2')
    A('s_add_u32 s79, s79, s93')
    A(f's_add_u32 s79, s79, {WS_FLAG}')
    A('s_lshl_b32 s93, s84, 2')
    A('s_add_u32 s80, s56, s93')
    A(f's_mov_b32 s96, {f2u(LOG2E)}')
    A(f's_mov_b32 s97, {f2u(LOG2E)}')

    side = [] if opts.get('no_side') else side_stream(name, opts, R)
    st = dict(i=0, hold=0, nbar=0, wantbar=None)

    def emit_side(it, k):
        while k > 0 and st['i'] < len(side):
            x = side[st['i']]
            if isinstance(x, str):
                E(x)
                k -= 1
            elif x[0] == 'vm':
                E(x[1]); vm.issue(x[2]); k -= 1
            elif x[0] == 'vmx':
                for ins in x[1]:
                    E(ins)
                vm.issue(x[2]); k -= 1
            elif x[0] == 'lg':
                E(x[1]); lg.issue(x[2]); k -= 1
            elif x[0] == 'wvm':
                A(f's_waitcnt vmcnt({min(63, vm.cnt(x[1]))})')
            elif x[0] == 'wlg':
                A(f's_waitcnt lgkmcnt({min(15, lg.cnt(x[1]))})')
            elif x[0] == 'delay':
                if st['hold'] == 0:
                    st['hold'] = it + x[1]
                if it < st['hold']:
                    return
                st['hold'] = 0
            elif x[0] == 'markbar':
                st['wantbar'] = st['nbar'] + 1
            elif x[0] == 'waitbar':
                if st['nbar'] < st['wantbar']:
                    return
            elif x[0] == 'kvready':
                pass
            st['i'] += 1

    def stage_of(i):
        return i >> 1 if i < 28 else NS3 + ((i - 28) >> 2)

    def is_last(i):
        return i + 1 < NI and stage_of(i + 1) != stage_of(i)

    def b_reads(i, T):
        out = []
        slot = stage_of(i) % 4
        for a in range(2):
            base = vRB + (T & 3) + (4 if slot >= 2 else 0)
            if i < 28:
                r = aB + T * 4 + 2 * a
                off = (slot & 1) * 32768 + (i & 1) * 16384 + (T >> 2) * 4096 + a * 2048
            else:
                m = i - 28
                r = aB + (m & 1) * 16 + T * 4 + 2 * a
                off = (slot & 1) * 32768 + (m & 3) * 8192 + a * 2048
            out.append(f'ds_read_b64_tr_b16 a[{r}:{r + 1}], v{base} offset:{off}')
        return out

    NI = 44
    NST = 18
    marks = {}

    def w0_begin(lab):
        A('s_cmp_lg_u32 s87, 0')
        A(f's_cbranch_scc1 {lab}')

    def signal(soff, lab):
        w0_begin(lab)
        A(f'v_mov_b32 v{vPoll}, 1')
        A('s_mov_b64 exec, 1')
        A(f'buffer_store_dword v{vPoll}, v{vGo}, s[40:43], {soff} offen sc1')
        A('s_mov_b64 exec, -1')
        A.label(lab)

    def poll_issue(tag, soff, mask, lab):
        w0_begin(lab)
        A(f'v_lshrrev_b32 v{vPoll}, 2, v{vL16}')
        A(f'v_and_b32 v{vPoll}, {mask * 4}, v{vPoll}')
        A(f'buffer_load_dword v{vPoll}, v{vPoll}, s[40:43], {soff} offen sc1')
        A.label(lab)
        marks[tag] = vm.n

    def poll_check(tag, soff, mask, lab):
        w0_begin(f'{lab}_rdy')
        A(f's_waitcnt vmcnt({min(63, vm.n - marks[tag])})')
        A(f'v_cmp_ne_u32 vcc, 0, v{vPoll}')
        A('s_cmp_eq_u64 vcc, -1')
        A(f's_cbranch_scc1 {lab}_rdy')
        A('s_mov_b32 s91, 100000')
        A.label(f'{lab}_spin')
        A('s_sleep 3')
        A(f'v_lshrrev_b32 v{vPoll}, 2, v{vL16}')
        A(f'v_and_b32 v{vPoll}, {mask * 4}, v{vPoll}')
        A(f'buffer_load_dword v{vPoll}, v{vPoll}, s[40:43], {soff} offen sc1')
        A('s_waitcnt vmcnt(0)')
        A(f'v_cmp_ne_u32 vcc, 0, v{vPoll}')
        A('s_cmp_eq_u64 vcc, -1')
        A(f's_cbranch_scc1 {lab}_rdy')
        A('s_sub_u32 s91, s91, 1')
        A('s_cmp_lg_u32 s91, 0')
        A(f's_cbranch_scc1 {lab}_spin')
        A.flush_hazards()
        A.label(f'{lab}_rdy')

    A(f's_waitcnt vmcnt({vm.cnt(("W", 0))})')
    A('s_barrier')
    ts_stamp(A, opts, 65)
    for T in range(8):
        for ins in b_reads(0, T):
            A(ins)
            lg.issue(('B', 0, T))
    OSIG = int(opts.get('osig', 19))
    OPOLL, OCHK = OSIG + 3, OSIG + 4
    PSIG = int(opts.get('psig', 34))
    PPOLL, PCHK = int(opts.get('ppoll', 37)), int(opts.get('pchk', 39))
    XBAR = (PSIG, PCHK, OSIG, OCHK)
    XLB = (29, 30)
    rate = int(opts.get('rate', 4))
    pend = []
    nexta = D
    noside = opts.get('no_side')
    RX = 96
    PL = 112
    for it in range(NI):
        s = stage_of(it)
        last = is_last(it)
        drain = last or it in XLB
        bar = drain or it in XBAR
        w = vm.cnt(('A', it))
        if last:
            w = min(w, vm.cnt(('W', s + 1)))
        if it == PSIG:
            w = min(w, vm.cnt('pst'))
        if it == OSIG and not noside:
            assert st['i'] == len(side), (st['i'], len(side))
            w = min(w, vm.cnt('ost'))
        if drain:
            A(f's_waitcnt vmcnt({min(w, 63)}) lgkmcnt(0)')
        else:
            A(f's_waitcnt vmcnt({min(w, 63)})')
        if it == 14:
            ts_stamp(A, opts, 66)
        if it == 28:
            ts_stamp(A, opts, 67)
        if it == OCHK and not noside:
            poll_check('o', 's53', 31, f'{name}_oc')
        if it == PCHK:
            poll_check('p', 's56', 1, f'{name}_pc')
        if bar:
            A('s_barrier')
        if last:
            st['nbar'] += 1
            if s + 4 < NST:
                pend += [(s + 4, i) for i in range(4)]
        if it == PSIG:
            signal('s80', f'{name}_ps')
        if it == OSIG and not noside:
            signal('s79', f'{name}_os')
        if it == 27:
            for T in range(8):
                A(f'v_subrev_u32 v{vRB + T}, s63, v{vRB + T}')
        if it == OPOLL and not noside:
            poll_issue('o', 's53', 31, f'{name}_op')
        if it == PPOLL:
            poll_issue('p', 's56', 1, f'{name}_pp')
        if it == OCHK + 1:
            A(f'buffer_load_dword v{vG}, v{vGo}, s[40:43], s52 offen sc1')
            vm.issue('g')
        ar = aA + (it % D) * 8
        extra = []
        if it == 28:
            extra = [None] * 2 + [('lg', [f'ds_write_b128 v{vXW}, v[{acc3 + (12 + q) * 4}:{acc3 + (12 + q) * 4 + 3}] offset:{q * 1024}']) for q in range(4)]
        if it == 29:
            extra = [('lg', [f'ds_read_b128 v[{RX + 4 * q}:{RX + 4 * q + 3}], v{vXR} offset:{q * 1024}']) for q in range(4)]
        if it == 30:
            for q in range(4):
                c = acc3 + (4 + q) * 4
                extra.append(('vm', [f'v_pk_add_f32 v[{c}:{c + 1}], v[{c}:{c + 1}], v[{RX + 4 * q}:{RX + 4 * q + 1}]',
                                     f'v_pk_add_f32 v[{c + 2}:{c + 3}], v[{c + 2}:{c + 3}], v[{RX + 4 * q + 2}:{RX + 4 * q + 3}]',
                                     f'buffer_store_dwordx4 v[{c}:{c + 3}], v{vL16}, s[40:43], s57 offen offset:{q * 1024} sc1'], 'pst'))
            extra += [('lg', [f'ds_write_b128 v{vXW}, v[{acc3 + (8 + q) * 4}:{acc3 + (8 + q) * 4 + 3}] offset:{q * 1024}']) for q in range(4)]
        if it == 31:
            extra = [('lg', [f'ds_read_b128 v[{RX + 4 * q}:{RX + 4 * q + 3}], v{vXR} offset:{q * 1024}'], 'x2') for q in range(4)]
        if it == 33:
            for q in range(4):
                c = acc3 + q * 4
                extra.append(('v', [f'v_pk_add_f32 v[{c}:{c + 1}], v[{c}:{c + 1}], v[{RX + 4 * q}:{RX + 4 * q + 1}]',
                                    f'v_pk_add_f32 v[{c + 2}:{c + 3}], v[{c + 2}:{c + 3}], v[{RX + 4 * q + 2}:{RX + 4 * q + 3}]']))
        if it == PCHK:
            extra = [('vm', [f'buffer_load_dwordx4 v[{PL + 4 * q}:{PL + 4 * q + 3}], v{vL16}, s[40:43], s58 offen offset:{q * 1024} sc1'], 'pld') for q in range(4)]

        def pop_extra():
            if extra:
                x = extra.pop(0)
                if x is None:
                    return
                for ins in x[1]:
                    E(ins)
                if x[0] == 'vm':
                    vm.issue(x[2])
                elif x[0] == 'lg':
                    lg.issue(x[2] if len(x) > 2 else None)

        def pop_dma():
            if pend:
                s2, i2 = pend.pop(0)
                for ins in dma(s2, i2):
                    E(ins)
                vm.issue(('W', s2))
        if it < 28:
            for T in range(8):
                b = aB + T * 4
                if not drain:
                    A(f's_waitcnt lgkmcnt({min(15, lg.cnt(("B", it, T)))})')
                for u in range(2):
                    c = acc3 + (u * 8 + T) * 4
                    cin = '0' if it == 0 else f'v[{c}:{c + 3}]'
                    E(f'v_mfma_f32_16x16x32_bf16 v[{c}:{c + 3}], a[{b}:{b + 3}], a[{ar + 4 * u}:{ar + 4 * u + 3}], {cin}')
                    if u == 0:
                        emit_side(it, rate)
                if it + 1 < 28 or T < 4:
                    for ins in b_reads(it + 1, T):
                        E(ins)
                        lg.issue(('B', it + 1, T))
                if T in (1, 5):
                    pop_dma()
        else:
            m = it - 28
            for T in range(4):
                b = aB + (m & 1) * 16 + T * 4
                if not drain:
                    A(f's_waitcnt lgkmcnt({min(15, lg.cnt(("B", it, T)))})')
                for u in range(2):
                    c = accA + (u * 4 + T) * 4
                    cin = '0' if m == 0 else f'v[{c}:{c + 3}]'
                    E(f'v_mfma_f32_16x16x32_bf16 v[{c}:{c + 3}], a[{b}:{b + 3}], a[{ar + 4 * u}:{ar + 4 * u + 3}], {cin}')
                    if u == 0 and it + 1 < NI:
                        for ins in b_reads(it + 1, T):
                            E(ins)
                            lg.issue(('B', it + 1, T))
                    pop_extra()
                if T in (1, 3):
                    pop_dma()
        assert not extra
        k = 0
        while nexta <= it + D and nexta < NI and (nexta < 28 or it >= OCHK) and k < 2:
            for ins in a_load(nexta):
                E(ins)
            vm.issue(); vm.issue(('A', nexta))
            nexta += 1
            k += 1
    ts_stamp(A, opts, 68)
    t0, t1, omg = 128, 129, 130
    for T in range(4):
        A(f'ds_write_b128 v{vXW}, v[{accA + 16 + 4 * T}:{accA + 19 + 4 * T}] offset:{T * 1024}')
    g = vG
    A(f'v_sub_f32 v{omg}, 1.0, v{g}')
    A(f'v_cvt_pk_bf16_f32 v{omg}, v{omg}, v{omg}')
    A(f'v_lshlrev_b32 v{omg}, 16, v{omg}')
    A('s_waitcnt lgkmcnt(0)')
    A('s_barrier')
    for i in range(4):
        A(f'ds_read_b128 v[{RX + 4 * i}:{RX + 4 * i + 3}], v{vXR} offset:{i * 1024}')
    A('s_waitcnt vmcnt(0)')
    for T in range(4):
        for h in (0, 2):
            c = acc3 + 4 * T + h
            A(f'v_pk_add_f32 v[{c}:{c + 1}], v[{c}:{c + 1}], v[{PL + 4 * T + h}:{PL + 4 * T + h + 1}]')

    def rnd_scale(c, sc):
        A(f'v_cvt_pk_bf16_f32 v{t0}, v{c}, v{c + 1}')
        A(f'v_cvt_pk_bf16_f32 v{t1}, v{c + 2}, v{c + 3}')
        A(f'v_lshlrev_b32 v{c}, 16, v{t0}')
        A(f'v_and_b32 v{c + 1}, 0xffff0000, v{t0}')
        A(f'v_lshlrev_b32 v{c + 2}, 16, v{t1}')
        A(f'v_and_b32 v{c + 3}, 0xffff0000, v{t1}')
        for r in range(4):
            A(f'v_mul_f32 v{c + r}, v{sc}, v{c + r}')
        A(f'v_cvt_pk_bf16_f32 v{t0}, v{c}, v{c + 1}')
        A(f'v_cvt_pk_bf16_f32 v{t1}, v{c + 2}, v{c + 3}')
        A(f'v_lshlrev_b32 v{c}, 16, v{t0}')
        A(f'v_and_b32 v{c + 1}, 0xffff0000, v{t0}')
        A(f'v_lshlrev_b32 v{c + 2}, 16, v{t1}')
        A(f'v_and_b32 v{c + 3}, 0xffff0000, v{t1}')
    for T in range(4):
        rnd_scale(acc3 + 4 * T, omg)
    A('s_waitcnt lgkmcnt(0)')
    for T in range(4):
        cb = acc3 + T * 4
        ca = accA + T * 4
        for h in (0, 2):
            A(f'v_pk_add_f32 v[{ca + h}:{ca + h + 1}], v[{ca + h}:{ca + h + 1}], v[{RX + 4 * T + h}:{RX + 4 * T + h + 1}]')
        rnd_scale(ca, g)
        for r in range(4):
            A(f'v_add_f32 v{cb + r}, v{cb + r}, v{ca + r}')
        A(f'v_cvt_pk_bf16_f32 v{cb}, v{cb}, v{cb + 1}')
        A(f'v_cvt_pk_bf16_f32 v{cb + 1}, v{cb + 2}, v{cb + 3}')
        A(f'buffer_store_dwordx2 v[{cb}:{cb + 1}], v{vOut}, s[24:27], 0 offen offset:{T * 32}')
    ts_store(A, opts, 1, [65, 66, 67, 68, 59, 60] if opts.get('clk3') else [64, 65, 66, 67, 68])
    if opts.get('clk3'):
        A('v_mov_b32 v0, s61\nv_mov_b32 v1, s69\nbuffer_store_dwordx2 v[0:1], v8, s[40:43], s3 offen offset:24')
```

```python
import sys
from asmlib import kd
import gen_k1b as gen_k1

HEADER = open('gated_mix__linear_kernel_hedgehog__glu_gated_geglu__prompt.s.ref').read().split('; Override launch')[0]

def build(kernels):
    out = HEADER
    for (name, text, vg, ac, grid, block, lds) in kernels:
        out += f'; @launch kernel={name} grid=({grid},1,1) block=({block},1,1) lds={lds}\n'
    out += '.amdgcn_target "amdgcn-amd-amdhsa--gfx950"\n.text\n'
    for (name, text, vg, ac, grid, block, lds) in kernels:
        out += text + '\n'
    for (name, text, vg, ac, grid, block, lds) in kernels:
        out += kd(name, vg, ac)
    return out

if __name__ == '__main__':
    which = sys.argv[1] if len(sys.argv) > 1 else 'all'
    outp = sys.argv[2] if len(sys.argv) > 2 else 'out.s'
    ks = []
    opts = dict((o.split('=')[0], (o.split('=')[1].replace('_', ' ') if '=' in o else True)) for o in sys.argv[3:])
    if which == 'fused':
        opts['fused'] = True
    t, vg, ac = gen_k1.gen_k1('k1_kernel', opts=opts)
    ks.append(('k1_kernel', t, vg, ac, 256, 512, gen_k1.K1_LDS))
    if which == 'all':
        import gen_k23
        t, vg, ac = gen_k23.gen_k2('k2_kernel', opts=opts)
        ks.append(('k2_kernel', t, vg, ac, 256, 256, gen_k23.K2_LDS))
        t, vg, ac = gen_k23.gen_k3('k3_kernel', opts=opts)
        ks.append(('k3_kernel', t, vg, ac, 256, 256, gen_k23.K3_LDS))
    if which == 'v2':
        import gen_k3b
        t, vg, ac = gen_k3b.gen_k3('k3_kernel', opts=opts)
        ks.append(('k3_kernel', t, vg, ac, 256, 512 if opts.get('no_aux') else 768, gen_k3b.K3_LDS))
    if which == 'v3':
        import gen_p3
        t, vg, ac = gen_p3.gen_k3('k3_kernel', opts=opts)
        ks.append(('k3_kernel', t, vg, ac, 256, 512, gen_p3.P3_LDS))
    open(outp, 'w').write(build(ks))
```

```python
from asmlib import Asm
import struct

WS_A = 0
WS_Q = 0x1400000
WS_KV = 0x1800000
WS_G = 0x1C00000
WS_FLAG = 0x1D00000
FL_O, FL_P, FL_H, FL_KV = 0, 1024, 17408, 18432
WS_WF = 0x1C10000
WS_TS = 0x1E00000
WS_P = 0x2000000
WS_BYTES = 0x4000000
CLK3 = {65: 59, 66: 60, 67: 61, 68: 69}


def ts_stamp(A, opts, sdst, tmp=100):
    if opts.get('ts'):
        if opts.get('clk') and sdst in (37, 38):
            A(f's_memtime s[{tmp}:{tmp + 1}]')
            A('s_waitcnt lgkmcnt(0)')
            A(f's_mov_b32 s{sdst + 23}, s{tmp}')
        if opts.get('clk3') and sdst in (65, 66, 67, 68):
            A(f's_memtime s[{tmp}:{tmp + 1}]')
            A('s_waitcnt lgkmcnt(0)')
            A(f's_mov_b32 s{CLK3[sdst]}, s{tmp}')
        A(f's_memrealtime s[{tmp}:{tmp + 1}]')
        A('s_waitcnt lgkmcnt(0)')
        A(f's_mov_b32 s{sdst}, s{tmp}')


def ts_store(A, opts, kern, sregs, swave='s87', tmp=100):
    if not opts.get('ts'):
        return
    A(f's_memrealtime s[{tmp}:{tmp + 1}]')
    A('s_waitcnt lgkmcnt(0)')
    A(f's_mov_b32 s3, s{tmp}')
    A('s_waitcnt vmcnt(0)')
    A(f's_memrealtime s[{tmp}:{tmp + 1}]')
    A('s_waitcnt lgkmcnt(0)')
    regs = list(sregs) + [3, tmp]
    for i, r in enumerate(regs):
        A(f'v_mov_b32 v{i}, s{r}')
    A('s_lshl_b32 s3, s2, 4')
    A(f's_add_u32 s3, s3, {swave}')
    A('s_lshl_b32 s3, s3, 5')
    A(f's_add_u32 s3, s3, {WS_TS + kern * 131072}')
    A('v_mov_b32 v8, 0')
    A('s_mov_b64 exec, 1')
    A('buffer_store_dwordx4 v[0:3], v8, s[40:43], s3 offen')
    A('buffer_store_dwordx4 v[4:7], v8, s[40:43], s3 offen offset:16')

X_BASE = 0
W_BASE = 65536
WST = 20480
SPARE = W_BASE + 4 * WST
K1_LDS = 163840

C1 = -2.0 * 0.7978845608028654 * 1.4426950408889634
C2 = C1 * 0.044715
LOG2E = 1.4426950408889634


def f2u(f):
    return '0x%08x' % struct.unpack('<I', struct.pack('<f', f))[0]


def gen_k1(name, opts=None):
    opts = opts or {}
    MT = 4
    fused = opts.get('fused')
    A = Asm()
    accum_off = 172

    def acc(nt, t):
        return (t * 10 + nt) * 4
    misc = 160
    a_A = [0, 16]
    a_B = 32
    a_BX = [60, 72]
    vXR = [misc, misc + 1]
    vBT = [[misc + 2, misc + 3], [misc + 4, misc + 5]]
    vB5 = [misc + 6, misc + 7]
    vDX = [misc + 8, misc + 9]
    vDW = [misc + 10, misc + 11]

    def Breg(jt, par):
        if jt < 7:
            return a_B + 4 * jt
        return a_BX[par] + 4 * (jt - 7)

    A.raw(f'.globl {name}\n.p2align 8\n.type {name},@function\n{name}:')
    A('s_cmp_ge_u32 s2, 256')
    A(f's_cbranch_scc1 {name}_end')
    ts_stamp(A, opts, 36)
    A('s_load_dwordx4 s[4:7], s[0:1], 0')
    A('s_load_dwordx4 s[8:11], s[0:1], 16')
    A('s_load_dwordx4 s[12:15], s[0:1], 40')
    A('s_load_dwordx2 s[60:61], s[0:1], 56')
    A('s_load_dwordx2 s[40:41], s[0:1], 88')
    A('s_load_dwordx2 s[96:97], s[0:1], 64')
    A('s_load_dwordx2 s[62:63], s[0:1], 80')
    A('v_lshrrev_b32 v1, 6, v0')
    A('v_and_b32 v0, 63, v0')
    A('v_readfirstlane_b32 s87, v1')
    A('s_and_b32 s85, s2, 7')
    A('s_lshr_b32 s91, s2, 3')
    A('s_and_b32 s83, s91, 3')
    A('s_lshr_b32 s86, s91, 2')
    A('s_and_b32 s88, s87, 3')
    A('s_lshr_b32 s89, s87, 2')
    A('s_and_b32 s82, s83, 1')
    A('s_waitcnt lgkmcnt(0)')
    A('s_mov_b32 s16, s4\ns_mov_b32 s17, s5\ns_mov_b32 s18, 0x400000\ns_mov_b32 s19, 0x00020000')
    A(f's_mov_b32 s42, {WS_BYTES}\ns_mov_b32 s43, 0x00020000')
    A('s_mov_b32 s98, 2048\ns_mov_b32 s99, 0x00020000')
    A('s_lshl_b32 s90, s85, 2')
    A('s_add_u32 s90, s90, s83')
    A('s_lshl_b32 s39, s90, 3')
    A('s_add_u32 s39, s39, s87')
    A('s_lshl_b32 s91, s86, 8')
    A('s_add_u32 s39, s39, s91')
    A('s_lshl_b32 s91, s39, 11')
    A('v_lshlrev_b32 v2, 4, v0')
    for hf in range(2):
        A(f'buffer_load_dwordx4 v[{128 + 4 * hf}:{131 + 4 * hf}], v2, s[16:19], s91 offen offset:{hf * 1024}')
    for hf in range(2):
        A(f'buffer_load_dwordx4 v[{136 + 4 * hf}:{139 + 4 * hf}], v2, s[96:99], 0 offen offset:{hf * 1024}')
    A('s_mov_b32 s44, s8\ns_mov_b32 s45, s9\ns_mov_b32 s46, 65536\ns_mov_b32 s47, 0x00020000')
    A('s_mov_b32 s35, 0x00020000')
    if not fused:
        A('s_or_b32 s90, s2, s87')
        A('s_cmp_lg_u32 s90, 0')
        A(f's_cbranch_scc1 {name}_nz')
        A('v_mov_b32 v4, 0\nv_mov_b32 v5, 0\nv_mov_b32 v6, 0\nv_mov_b32 v7, 0')
        A(f's_mov_b32 s90, {WS_FLAG}')
        for i in range(17):
            A('buffer_store_dwordx4 v[4:7], v2, s[40:43], s90 offen')
            A('s_add_u32 s90, s90, 1024')
        A('s_waitcnt vmcnt(0)')
        A.label(f'{name}_nz')
    A('v_and_b32 v2, 15, v0')
    A('v_lshrrev_b32 v3, 4, v0')
    A('v_lshrrev_b32 v5, 3, v0')
    A('v_and_b32 v6, 7, v0')
    A('v_xor_b32 v6, v6, v3')
    A('v_lshlrev_b32 v7, 4, v6')
    A(f'v_lshl_add_u32 v{vDX[0]}, v5, 11, v7')
    A('v_xor_b32 v6, 4, v6')
    A('v_lshlrev_b32 v7, 4, v6')
    A(f'v_lshl_add_u32 v{vDX[1]}, v5, 11, v7')
    A('s_lshl_b32 s90, s86, 19')
    A('s_lshl_b32 s91, s87, 16')
    A('s_add_u32 s48, s90, s91')
    for q in range(1, 4):
        A(f's_add_u32 s{48 + q}, s48, {q * 16384}')
    A('s_lshl_b32 s58, s87, 12')
    A('v_lshrrev_b32 v5, 1, v2')
    A('v_xor_b32 v5, v5, v3')
    A('s_lshl_b32 s90, s88, 13')
    A('v_lshlrev_b32 v6, 7, v2')
    A('v_add_u32 v6, s90, v6')
    A(f'v_lshl_add_u32 v{vXR[0]}, v5, 4, v6')
    A('v_xor_b32 v5, 4, v5')
    A(f'v_lshl_add_u32 v{vXR[1]}, v5, 4, v6')
    A('v_lshrrev_b32 v5, 5, v0')
    A('v_and_b32 v6, 1, v3')
    A('v_lshrrev_b32 v7, 2, v0')
    A('v_and_b32 v7, 3, v7')
    A('v_lshl_add_u32 v7, v6, 2, v7')
    A('v_lshrrev_b32 v9, 1, v7')
    A('v_lshl_add_u32 v7, v5, 4, v7')
    A('v_and_b32 v8, 3, v0')
    A('v_lshlrev_b32 v8, 3, v8')
    A('s_lshl_b32 s90, s89, 1')
    for e in range(2):
        A(f's_add_u32 s91, s90, {e}')
        A('v_xor_b32 v10, s91, v9')
        A('v_lshlrev_b32 v10, 5, v10')
        A('v_lshl_add_u32 v10, v7, 7, v10')
        A(f'v_add3_u32 v{vBT[0][e]}, v10, v8, 0')
        A(f'v_add_u32 v{vBT[0][e]}, {W_BASE}, v{vBT[0][e]}')
        A(f'v_add_u32 v{vBT[1][e]}, {2 * WST}, v{vBT[0][e]}')
    A('v_xor_b32 v10, s89, v6')
    A('v_lshlrev_b32 v10, 5, v10')
    A('v_lshl_add_u32 v10, v7, 6, v10')
    A(f'v_add3_u32 v{vB5[0]}, v10, v8, 0')
    A(f'v_add_u32 v{vB5[0]}, {W_BASE + 4 * 4096}, v{vB5[0]}')
    A(f'v_add_u32 v{vB5[1]}, {2 * WST}, v{vB5[0]}')
    A('v_lshrrev_b32 v5, 3, v0')
    A('v_lshrrev_b32 v6, 2, v5')
    A('v_and_b32 v7, 3, v5')
    A('v_lshl_add_u32 v6, v6, 3, v7')
    A('v_and_b32 v7, 6, v5')
    A('v_and_b32 v8, 7, v0')
    A('v_xor_b32 v7, v7, v8')
    A('v_lshlrev_b32 v7, 4, v7')
    A('v_lshrrev_b32 v9, 2, v0')
    A('v_and_b32 v10, 3, v9')
    A('v_and_b32 v11, 4, v9')
    A('v_lshl_add_u32 v10, v11, 1, v10')
    A('v_and_b32 v12, 8, v9')
    A('v_lshrrev_b32 v12, 1, v12')
    A('v_add_u32 v10, v10, v12')
    A('v_lshrrev_b32 v11, 1, v11')
    A('v_and_b32 v12, 3, v0')
    A('v_xor_b32 v11, v11, v12')
    A('v_lshlrev_b32 v11, 4, v11')
    A('v_mul_u32_u24 v10, 7168, v10')
    A(f'v_add_u32 v{vDW[1]}, v10, v11')
    A('s_sub_u32 s90, s87, 1')
    A('s_lshl_b32 s90, s90, 8')
    A('s_add_u32 s90, s90, s2')
    A(f's_mov_b32 s32, s6\ns_mov_b32 s33, s7\ns_mov_b32 s34, {1024 * 6144}\ns_mov_b32 s59, {64 * 6144}')
    A('s_cmp_ge_u32 s90, 384')
    A('s_cselect_b32 s32, s12, s32')
    A('s_cselect_b32 s33, s13, s33')
    A(f's_cselect_b32 s34, {1024 * 7168}, s34')
    A(f's_cselect_b32 s59, {64 * 7168}, s59')
    A('s_cselect_b32 s91, 384, 0')
    A('s_cmp_ge_u32 s90, 832')
    A('s_cselect_b32 s32, s14, s32')
    A('s_cselect_b32 s33, s15, s33')
    A('s_cselect_b32 s91, 832, s91')
    A('s_cmp_ge_u32 s87, 6')
    A('s_cselect_b32 s32, s60, s32')
    A('s_cselect_b32 s33, s61, s33')
    A(f's_cselect_b32 s59, {512 * 1024}, s59')
    A('s_cselect_b32 s91, 1280, s91')
    A('s_cselect_b32 s93, 0, 2')
    A('s_sub_u32 s90, s90, s91')
    A('s_lshr_b32 s91, s90, 4')
    A('s_lshl_b32 s91, s91, 14')
    A('s_and_b32 s90, s90, 15')
    A('s_lshl_b32 s90, s90, 7')
    A('s_add_u32 s76, s90, s91')
    A('s_cmp_eq_u32 s87, 0')
    A('s_cselect_b32 s32, s4, s32')
    A('s_cselect_b32 s33, s5, s33')
    A('s_cselect_b32 s34, 0x400000, s34')
    A('s_cselect_b32 s59, 128, s59')
    A('s_lshl_b32 s90, s2, 14')
    A('s_cmp_eq_u32 s87, 0')
    A('s_cselect_b32 s76, s90, s76')
    A('s_mul_i32 s93, s93, s59')
    A('s_add_u32 s76, s76, s93')
    A('s_and_b32 s81, s87, 3')
    A('s_lshr_b32 s90, s81, 1')
    A('s_lshl_b32 s90, s90, 4')
    A('s_and_b32 s91, s81, 1')
    A('s_lshl_b32 s91, s91, 2')
    A('s_add_u32 s80, s90, s91')
    A('s_mul_i32 s79, s85, 896')
    A('s_cmp_ge_u32 s83, 2')
    A(f's_cbranch_scc1 {name}_typeA')

    def set_srd(slot, lo, hi, size):
        b = 20 + 4 * slot
        A(f's_mov_b32 s{b}, {lo}\ns_mov_b32 s{b + 1}, {hi}\ns_mov_b32 s{b + 2}, {size}\ns_mov_b32 s{b + 3}, 0x00020000')

    def set_m0(slot, sreg):
        A(f's_mov_b32 s{64 + 4 * slot}, {sreg}')
        for st in range(1, 4):
            A(f's_add_u32 s{64 + 4 * slot + st}, s{64 + 4 * slot + st - 1}, {WST}')

    def dma_x(slot):
        ops = []
        for q in range(4):
            ops.append([f's_add_u32 m0, s58, {X_BASE + slot * 32768 + q * 1024}',
                        f'buffer_load_dwordx4 v{vDX[q & 1]}, s[16:19], s{48 + q} offen lds',
                        f's_add_u32 s{48 + q}, s{48 + q}, 128'])
        return ops

    def dma_w(typ, hi, stage):
        ops = []
        for q in range(2 if hi else 3):
            srd = 20 + 4 * q
            vo = vDW[1] if (typ == 'B' and q == 2) else vDW[0]
            ops.append([f's_mov_b32 m0, s{64 + 4 * q + stage}',
                        f'buffer_load_dwordx4 v{vo}, s[{srd}:{srd + 3}], s{52 + q} offen lds',
                        f's_add_u32 s{52 + q}, s{52 + q}, s{55 + q}'])
        return ops

    def dma_pf():
        return [[f's_mov_b32 m0, {SPARE + 4096}',
                 f'buffer_load_dwordx4 v{vDX[0]}, s[32:35], s76 offen lds',
                 's_add_u32 s76, s76, s59']]

    def dma_pf_wo():
        return [['s_lshl_b32 s90, s87, 8',
                 's_add_u32 s90, s90, s2',
                 's_lshr_b32 s91, s90, 4',
                 's_lshl_b32 s91, s91, 14',
                 's_and_b32 s90, s90, 15',
                 's_lshl_b32 s90, s90, 7',
                 's_add_u32 s90, s90, s91',
                 f's_mov_b32 s32, s10', 's_mov_b32 s33, s11', f's_mov_b32 s34, {1024 * 2048}',
                 f's_mov_b32 m0, {SPARE + 4096}',
                 f'buffer_load_dwordx4 v{vDX[0]}, s[32:35], s90 offen lds']]

    def ntiles(typ):
        if typ == 'A':
            return [('q', 0, 0), ('q', 0, 1), ('k', 1, 0), ('k', 1, 1), ('v', 2, 0), ('v', 2, 1),
                    ('G', 3, 0), ('G', 3, 1), ('U', 4, 0), ('U', 4, 1)]
        return [('G', 0, 0), ('G', 0, 1), ('G', 1, 0), ('G', 1, 1), ('G', 'h', 0),
                ('U', 2, 0), ('U', 2, 1), ('U', 3, 0), ('U', 3, 1), ('U', 'h', 1)]

    def b_reads(typ, jt, stage, par):
        kind, ch, e = ntiles(typ)[jt]
        reg = Breg(jt, par)
        out = []
        for a in range(2):
            if ch == 'h':
                base = vB5[stage >> 1]
                off = (stage & 1) * WST + e * 2048 + a * 512
            else:
                base = vBT[stage >> 1][e]
                off = (stage & 1) * WST + ch * 4096 + a * 1024
            out.append(f'ds_read_b64_tr_b16 a[{reg + 2 * a}:{reg + 2 * a + 1}], v{base} offset:{off}')
        return out

    def a_reads(kb, par):
        slot, half = (kb >> 1) & 1, kb & 1
        return [f'ds_read_b128 a[{a_A[par] + 4 * t}:{a_A[par] + 4 * t + 3}], v{vXR[half]} offset:{X_BASE + slot * 32768 + t * 2048}'
                for t in range(MT)]

    def step(typ, hi, s, rd, dma, vmwait, barrier=True):
        par = s & 1
        nm = 10 * MT
        fill = [[] for _ in range(nm)]
        if rd and not opts.get('no_reads'):
            rstage = (s + 1) % 4
            early = a_reads(s + 1, par ^ 1)
            for jt in range(7, 10):
                early += b_reads(typ, jt, rstage, par ^ 1)
            for q, ins in enumerate(early):
                fill[q].append(ins)
            for jt in range(7):
                r2 = b_reads(typ, jt, rstage, par ^ 1)
                fill[MT * jt + MT - 1].append(r2[0])
                fill[MT * jt + MT].append(r2[1])
        if dma == 'wo':
            if not opts.get('no_pf'):
                fill[MT + 6] += dma_pf_wo()[0]
        elif isinstance(dma, list):
            for q, ins in enumerate(dma):
                fill[2 + q * 36 // len(dma)].append(ins)
        elif dma == 'early':
            import gen_p3
            es = gen_p3.early_setup(170, 168)
            for q, ins in enumerate(es):
                fill[q // 3].append(ins)
            ed = gen_p3.early_dma(170)
            for q in range(8):
                fill[12 + 2 * q] += ed[3 * q:3 * q + 3]
        elif dma and not opts.get('no_dma'):
            ops = []
            if s & 1:
                ops += dma_x((s >> 1) & 1)
            ops += dma_w(typ, hi, s)
            if s & 1 and not opts.get('no_pf'):
                ops += dma_pf()
            start = MT + 6
            stride = (nm - start - 2) // len(ops)
            for q, o in enumerate(ops):
                fill[start + q * stride] += o
        tl = ntiles(typ)
        idx = 0
        for jt in range(10):
            b = Breg(jt, par)
            for t in range(MT):
                a = a_A[par] + 4 * t
                c = acc(jt, t)
                c = f'v[{c}:{c + 3}]'
                if opts.get('no_mfma'):
                    pass
                elif opts.get('mf32'):
                    if t & 1:
                        ci = (jt * 2 + (t >> 1)) % 10
                        A(f'v_mfma_f32_32x32x16_bf16 v[{16 * ci}:{16 * ci + 15}], a[{b}:{b + 3}], a[{a}:{a + 3}], v[{16 * ci}:{16 * ci + 15}]')
                elif tl[jt][0] == 'v':
                    A(f'v_mfma_f32_16x16x32_bf16 {c}, a[{a}:{a + 3}], a[{b}:{b + 3}], {c}')
                else:
                    A(f'v_mfma_f32_16x16x32_bf16 {c}, a[{b}:{b + 3}], a[{a}:{a + 3}], {c}')
                for ins in fill[idx]:
                    A(ins)
                idx += 1
        if barrier:
            if isinstance(vmwait, tuple):
                lab = f'{name}_{typ}{hi}_w{s}'
                A(f's_waitcnt vmcnt({vmwait[0]}) lgkmcnt(0)')
                A('s_cmp_eq_u32 s84, 7')
                A(f's_cbranch_scc1 {lab}')
                A(f's_waitcnt vmcnt({vmwait[1]})')
                A.label(lab)
            elif vmwait is not None:
                A(f's_waitcnt vmcnt({vmwait}) lgkmcnt(0)')
            else:
                A('s_waitcnt lgkmcnt(0)')
            A('s_barrier')

    def clear_flags(tag):
        A('v_mov_b32 v4, 0')
        A('s_lshl_b32 s90, s85, 2')
        A('s_add_u32 s90, s90, s83')
        A('s_lshl_b32 s91, s86, 7')
        A('s_lshl_b32 s92, s90, 2')
        A('s_add_u32 s92, s92, s91')
        A(f's_add_u32 s94, s92, {WS_FLAG + FL_H}')
        A('s_and_b32 s92, s2, 31')
        A('s_lshl_b32 s92, s92, 2')
        A('s_add_u32 s92, s92, s91')
        A(f's_add_u32 s92, s92, {WS_FLAG + FL_O}')
        A('s_cmp_eq_u32 s88, 1')
        A('s_cselect_b32 s94, s92, s94')
        A('s_lshl_b32 s92, s85, 1')
        A('s_add_u32 s92, s92, s82')
        A('s_lshl_b32 s92, s92, 7')
        A('s_lshl_b32 s93, s86, 2')
        A('s_add_u32 s92, s92, s93')
        A(f's_add_u32 s92, s92, {WS_FLAG + FL_KV}')
        if typ_of[tag] == 'A':
            A('s_cmp_eq_u32 s88, 2')
            A('s_cselect_b32 s94, s92, s94')
        A('s_lshr_b32 s92, s85, 1')
        A('s_lshl_b32 s92, s92, 2')
        A('s_add_u32 s92, s92, s83')
        A('s_lshl_b32 s92, s92, 3')
        A('s_add_u32 s92, s92, s86')
        A('s_lshl_b32 s92, s92, 7')
        A('s_and_b32 s93, s85, 1')
        A('s_lshl_b32 s93, s93, 2')
        A('s_add_u32 s92, s92, s93')
        A(f's_add_u32 s92, s92, {WS_FLAG + FL_P}')
        A('s_cmp_eq_u32 s88, 3')
        A('s_cselect_b32 s94, s92, s94')
        A('s_mov_b64 exec, 1')
        A('buffer_store_dword v4, v4, s[40:43], s94 offen sc1')
        A('s_mov_b64 exec, -1')

    typ_of = {}

    def body(typ, hi):
        tag = f'{name}_{typ}{hi}'
        nw = 2 if hi else 3
        npf = 0 if opts.get('no_pf') else 1
        NB0 = 4 * npf
        seq = dma_x(0) + dma_w(typ, hi, 0) + dma_w(typ, hi, 1) + dma_x(1) + dma_w(typ, hi, 2) + dma_w(typ, hi, 3)
        for i in range(NB0):
            seq += dma_pf()
        for o in seq:
            for ins in o:
                A(ins)
        ntot = 8 + 4 * nw + NB0
        if fused:
            typ_of[tag] = typ
            clear_flags(tag)
            ntot += 1
            NB0 += 1
            A('s_mov_b32 s96, s62\ns_mov_b32 s97, s63\ns_mov_b32 s98, 256')
            A('s_cmp_eq_u32 s87, 0')
            A('s_cselect_b32 s63, 6, 99')
        A(f's_waitcnt vmcnt({ntot})')
        if typ == 'A':
            for i in range(8):
                A(f'v_lshl_or_b32 v{100 + i}, v{109 + 2 * i}, 16, v{108 + 2 * i}')
            A('v_lshlrev_b32 v5, 4, v0')
            A('s_lshl_b32 s90, s89, 11')
            A('v_add_u32 v5, s90, v5')
            A(f'v_add_u32 v5, {SPARE}, v5')
            A('ds_write_b128 v5, v[100:103]')
            A('ds_write_b128 v5, v[104:107] offset:1024')
            A('s_or_b32 s90, s86, s88')
            A('s_cmp_lg_u32 s90, 0')
            A(f's_cbranch_scc1 {tag}_nowf')
            A('v_lshlrev_b32 v5, 4, v0')
            A('s_lshl_b32 s90, s77, 11')
            A(f's_add_u32 s90, s90, {WS_WF}')
            A('buffer_store_dwordx4 v[100:103], v5, s[40:43], s90 offen sc1')
            A('buffer_store_dwordx4 v[104:107], v5, s[40:43], s90 offen offset:1024 sc1')
            A('s_nop 1')
            A.label(f'{tag}_nowf')
        ga, gb, g1, g2, g3, g4 = 144, 145, 146, 147, 148, 149
        for i in range(8):
            xr, gr = 128 + i, 136 + i
            A(f'v_lshlrev_b32 v{g1}, 16, v{xr}')
            A(f'v_lshlrev_b32 v{g2}, 16, v{gr}')
            A(f'v_and_b32 v{g3}, 0xffff0000, v{xr}')
            A(f'v_and_b32 v{g4}, 0xffff0000, v{gr}')
            if i == 0:
                A(f'v_mul_f32 v{ga}, v{g1}, v{g2}')
                A(f'v_mul_f32 v{gb}, v{g3}, v{g4}')
            else:
                A(f'v_fmac_f32 v{ga}, v{g1}, v{g2}')
                A(f'v_fmac_f32 v{gb}, v{g3}, v{g4}')
        A(f'v_add_f32 v{ga}, v{ga}, v{gb}')
        for sh in (8, 4, 2, 1):
            A(f'v_add_f32_dpp v{ga}, v{ga}, v{ga} row_ror:{sh} row_mask:0xf bank_mask:0xf')
        for sw in ('v_permlane16_swap_b32', 'v_permlane32_swap_b32'):
            A(f'v_mov_b32 v{g1}, v{ga}')
            A(f'{sw} v{ga}, v{g1}')
            A(f'v_add_f32 v{ga}, v{ga}, v{g1}')
        A(f'v_cvt_pk_bf16_f32 v{ga}, v{ga}, v{ga}')
        A(f'v_lshlrev_b32 v{ga}, 16, v{ga}')
        A(f'v_mul_f32 v{ga}, {f2u(-LOG2E)}, v{ga}')
        A(f'v_exp_f32 v{ga}, v{ga}')
        A(f'v_add_f32 v{ga}, 1.0, v{ga}')
        A(f'v_rcp_f32 v{ga}, v{ga}')
        A(f'v_cvt_pk_bf16_f32 v{ga}, v{ga}, v{ga}')
        A(f'v_lshlrev_b32 v{ga}, 16, v{ga}')
        A(f'v_mov_b32 v{g1}, 0')
        A('s_lshl_b32 s90, s39, 2')
        A(f's_add_u32 s90, s90, {WS_G}')
        A('s_mov_b64 exec, 1')
        A(f'buffer_store_dword v{ga}, v{g1}, s[40:43], s90 offen sc1')
        A('s_mov_b64 exec, -1')
        NBX = NB0 + 1
        A('s_waitcnt lgkmcnt(0)')
        for i in range(160):
            if i not in (ga, g1):
                A(f'v_mov_b32 v{i}, 0')
        A(f's_waitcnt vmcnt({ntot + 1 - 4 - nw})')
        A('s_barrier')
        for ins in a_reads(0, 0):
            A(ins)
        for jt in range(10):
            for ins in b_reads(typ, jt, 0, 0):
                A(ins)
        A(f'v_mov_b32 v{ga}, 0')
        A(f's_waitcnt vmcnt({4 + 2 * nw + NBX}) lgkmcnt(0)')
        A('s_barrier')
        A('s_mov_b32 s84, 7')
        ts_stamp(A, opts, 37)
        A.flush_hazards()
        A.label(f'{tag}_loop')
        step(typ, hi, 0, True, True, (2 * nw + NBX, 2 * nw + npf))
        step(typ, hi, 1, True, True, (2 * nw + 4 + npf + NBX, 2 * nw + 4 + 2 * npf))
        step(typ, hi, 2, True, True, 2 * nw + npf)
        step(typ, hi, 3, True, True, 2 * nw + 4 + 2 * npf)
        A('s_sub_u32 s84, s84, 1')
        if fused:
            A('s_cmp_lg_u32 s84, s63')
            A(f's_cbranch_scc1 {tag}_noat')
            A('s_mov_b64 exec, 1')
            A(f'buffer_atomic_add v{vBT[0][0]}, off, s[96:99], 0 sc1')
            A('s_mov_b64 exec, -1')
            A.label(f'{tag}_noat')
        A('s_cmp_lg_u32 s84, 0')
        A(f's_cbranch_scc1 {tag}_loop')
        pre = [False, False]
        if fused:
            import gen_p4
            ps = gen_p4.pre_scalars()
            pre = [ps[:len(ps) // 2], ps[len(ps) // 2:]]
        if fused:
            ts_stamp(A, opts, 4)
        step(typ, hi, 0, True, pre[0], nw + npf)
        step(typ, hi, 1, True, pre[1], npf)
        if fused:
            ts_stamp(A, opts, 5)
        step(typ, hi, 2, True, 'wo', None)
        if fused:
            ts_stamp(A, opts, 6)
        late = opts.get('late_dma')
        step(typ, hi, 3, False, 'early' if fused and not late else False, None, barrier=False)
        ts_stamp(A, opts, 38)
        if fused and late:
            import gen_p3
            for ins in gen_p3.early_setup(170, 168) + gen_p3.early_dma(170):
                A(ins)

    A('s_mul_i32 s90, s82, 384')
    A('s_add_u32 s90, s90, s79')
    A('s_cmp_ge_u32 s87, 4')
    A('s_cselect_b32 s91, 0, 128')
    A('s_add_u32 s90, s90, s91')
    A('s_mul_i32 s91, s80, 7168')
    A('s_add_u32 s52, s90, s91')
    A('s_mov_b32 s53, s52')
    set_srd(0, 's12', 's13', 1024 * 7168)
    set_srd(1, 's14', 's15', 1024 * 7168)
    A('s_cmp_ge_u32 s87, 4')
    A('s_cselect_b32 s90, 0, 4096')
    A('s_lshl_b32 s91, s81, 10')
    A('s_add_u32 s90, s90, s91')
    A(f's_add_u32 s90, s90, {W_BASE}')
    set_m0(0, 's90')
    A('s_add_u32 s90, s90, 8192')
    set_m0(1, 's90')
    A('s_and_b32 s90, s87, 2')
    A('s_cmp_eq_u32 s90, 0')
    A('s_cselect_b32 s28, s12, s14')
    A('s_cselect_b32 s29, s13, s15')
    A(f's_mov_b32 s30, {1024 * 7168}\ns_mov_b32 s31, 0x00020000')
    A('s_and_b32 s91, s87, 1')
    A(f's_mul_i32 s91, s91, {16 * 7168}')
    A('s_lshl_b32 s92, s82, 6')
    A('s_add_u32 s91, s91, s92')
    A('s_add_u32 s91, s91, s79')
    A('s_add_u32 s54, s91, 256')
    A('s_lshl_b32 s90, s81, 10')
    A(f's_add_u32 s90, s90, {W_BASE + 16384}')
    set_m0(2, 's90')
    for q in range(3):
        A(f's_mov_b32 s{55 + q}, {32 * 7168}')
    A('v_mul_u32_u24 v6, 7168, v6')
    A(f'v_add_u32 v{vDW[0]}, v6, v7')
    A('s_cmp_ge_u32 s87, 4')
    A(f's_cbranch_scc1 {name}_B1')
    body('B', 0)
    A(f's_branch {name}_epiB')
    A.label(f'{name}_B1')
    body('B', 1)
    A.label(f'{name}_epiB')
    if fused:
        import gen_p4
        p4 = gen_p4.P4(A, name + '_pb', opts, 'B')
        epilogue_B(A, name, acc, misc, opts, p4)
        p4.main()
    else:
        if not opts.get('no_epi'):
            epilogue_B(A, name, acc, misc, opts)
        ts_store(A, opts, 0, [36, 37, 38] + ([60, 61] if opts.get('clk') else []))
    A('s_endpgm')

    A.label(f'{name}_typeA')
    A('s_lshl_b32 s78, s85, 1')
    A('s_add_u32 s78, s78, s82')
    A('v_lshlrev_b32 v4, 8, v3')
    A('v_lshl_add_u32 v4, v2, 1, v4')
    A('s_lshl_b32 s77, s78, 1')
    A('s_add_u32 s77, s77, s89')
    A('s_lshl_b32 s90, s77, 11')
    for ft in range(2):
        for jj in range(8):
            d = 16 * (jj >> 2) + (jj & 3)
            A(f'buffer_load_ushort v{108 + ft * 8 + jj}, v4, s[44:47], s90 offen offset:{d * 64 + ft * 32}')
    A('s_cmp_ge_u32 s87, 4')
    A(f's_cbranch_scc1 {name}_A1')
    A('s_mul_i32 s91, s80, 6144')
    A('s_lshl_b32 s90, s78, 7')
    A('s_add_u32 s52, s90, s91')
    A('s_add_u32 s53, s52, 2048')
    A('s_add_u32 s54, s52, 4096')
    A('s_lshl_b32 s90, s81, 10')
    A(f's_add_u32 s90, s90, {W_BASE}')
    for q in range(3):
        set_srd(q, 's6', 's7', 1024 * 6144)
        A(f's_mov_b32 s{55 + q}, {32 * 6144}')
        set_m0(q, 's90')
        A('s_add_u32 s90, s90, 4096')
    A('v_mul_u32_u24 v6, 6144, v6')
    A(f'v_add_u32 v{vDW[0]}, v6, v7')
    body('A', 0)
    A(f's_branch {name}_epiA')
    A.label(f'{name}_A1')
    A('s_mul_i32 s91, s80, 7168')
    A('s_lshl_b32 s90, s82, 7')
    A('s_add_u32 s90, s90, s79')
    A('s_add_u32 s90, s90, 640')
    A('s_add_u32 s52, s90, s91')
    A('s_mov_b32 s53, s52')
    set_srd(0, 's12', 's13', 1024 * 7168)
    set_srd(1, 's14', 's15', 1024 * 7168)
    A('s_lshl_b32 s90, s81, 10')
    A(f's_add_u32 s90, s90, {W_BASE + 3 * 4096}')
    for q in range(2):
        A(f's_mov_b32 s{55 + q}, {32 * 7168}')
        set_m0(q, 's90')
        A('s_add_u32 s90, s90, 4096')
    A('v_mul_u32_u24 v6, 7168, v6')
    A(f'v_add_u32 v{vDW[0]}, v6, v7')
    body('A', 1)
    A.label(f'{name}_epiA')
    if fused:
        p4 = gen_p4.P4(A, name + '_pa', opts, 'A')
        epilogue_A(A, name, acc, misc, opts, p4)
        p4.main()
    else:
        if not opts.get('no_epi'):
            epilogue_A(A, name, acc, misc, opts)
        ts_store(A, opts, 0, [36, 37, 38] + ([60, 61] if opts.get('clk') else []))
    A.label(f'{name}_end')
    A('s_endpgm')
    return A.text(), 256, accum_off


def h_flag_addr(A, d):
    A(f's_lshl_b32 {d}, s85, 2')
    A(f's_add_u32 {d}, {d}, s83')
    A(f's_lshl_b32 {d}, {d}, 2')
    A('s_lshl_b32 s93, s86, 7')
    A(f's_add_u32 {d}, {d}, s93')
    A(f's_add_u32 {d}, {d}, {WS_FLAG + FL_H}')


def epi_common(A, misc):
    vL16 = misc
    vC1 = misc + 2
    A('v_mbcnt_lo_u32_b32 v%d, -1, 0' % vL16)
    A('v_mbcnt_hi_u32_b32 v%d, -1, v%d' % (vL16, vL16))
    A(f'v_lshlrev_b32 v{vL16}, 4, v{vL16}')
    A(f'v_mov_b32 v{vC1}, {f2u(C1)}')
    A(f'v_mov_b32 v{vC1 + 1}, {f2u(C1)}')
    A(f's_mov_b32 s98, {f2u(C2)}')
    A(f's_mov_b32 s99, {f2u(C2)}')
    A('s_lshl_b32 s90, s86, 4')
    A('s_lshl_b32 s91, s88, 2')
    A('s_add_u32 s90, s90, s91')
    A('s_mul_i32 s91, s90, 147456')
    A('s_mul_i32 s92, s85, 14')


def gelu_tile(A, misc, g, u, out2, tmp):
    vC1 = misc + 2
    for h in (0, 2):
        A(f'v_pk_mul_f32 v[{tmp + h}:{tmp + h + 1}], v[{g + h}:{g + h + 1}], v[{g + h}:{g + h + 1}]')
    for h in (0, 2):
        A(f'v_pk_fma_f32 v[{tmp + h}:{tmp + h + 1}], v[{tmp + h}:{tmp + h + 1}], s[98:99], v[{vC1}:{vC1 + 1}]')
    for h in (0, 2):
        A(f'v_pk_mul_f32 v[{tmp + h}:{tmp + h + 1}], v[{tmp + h}:{tmp + h + 1}], v[{g + h}:{g + h + 1}]')
    for r in range(4):
        A(f'v_exp_f32 v{tmp + r}, v{tmp + r}')
    for h in (0, 2):
        A(f'v_pk_mul_f32 v[{g + h}:{g + h + 1}], v[{g + h}:{g + h + 1}], v[{u + h}:{u + h + 1}]')
    for h in (0, 2):
        A(f'v_pk_add_f32 v[{tmp + h}:{tmp + h + 1}], v[{tmp + h}:{tmp + h + 1}], 1.0 op_sel_hi:[1,0]')
    for r in range(4):
        A(f'v_rcp_f32 v{tmp + r}, v{tmp + r}')
    for h in (0, 2):
        A(f'v_pk_mul_f32 v[{g + h}:{g + h + 1}], v[{g + h}:{g + h + 1}], v[{tmp + h}:{tmp + h + 1}]')
    A(f'v_cvt_pk_bf16_f32 v{out2[0]}, v{g}, v{g + 1}')
    A(f'v_cvt_pk_bf16_f32 v{out2[1]}, v{g + 2}, v{g + 3}')


def epilogue_B(A, name, acc, misc, opts, p4=None):
    vL16 = misc
    T0, T1 = misc + 4, misc + 8
    ST = opts.get('st_mod', '')
    epi_common(A, misc)
    A('s_mul_i32 s93, s82, 6')
    A('s_add_u32 s93, s93, s92')
    A('s_add_u32 s93, s93, s89')
    A('s_lshl_b32 s93, s93, 10')
    A('s_add_u32 s94, s93, s91')
    A('s_add_u32 s93, s92, s82')
    A('s_add_u32 s93, s93, 4')
    A('s_lshl_b32 s93, s93, 10')
    A('s_add_u32 s95, s93, s91')
    A('s_lshl_b32 s93, s89, 3')
    A('s_add_u32 s95, s95, s93')
    if not p4:
        for t in range(4):
            for p in range(2):
                g0, g1, u0, u1 = acc(2 * p, t), acc(2 * p + 1, t), acc(5 + 2 * p, t), acc(6 + 2 * p, t)
                gelu_tile(A, misc, g0, u0, [u0, u0 + 1], T0)
                gelu_tile(A, misc, g1, u1, [u0 + 2, u0 + 3], T1)
                A(f'buffer_store_dwordx4 v[{u0}:{u0 + 3}], v{vL16}, s[40:43], s94 offen offset:{p * 2048}{ST}')
            g0, u0 = acc(4, t), acc(9, t)
            gelu_tile(A, misc, g0, u0, [u0, u0 + 1], T0)
            A(f'buffer_store_dwordx2 v[{u0}:{u0 + 1}], v{vL16}, s[40:43], s95 offen{ST}')
            if t < 3:
                A('s_add_u32 s94, s94, 147456')
                A('s_add_u32 s95, s95, 147456')
        return
    G1 = int(opts.get('g1', 8))
    PAT = int(opts.get('pat', 10))
    h_flag_addr(A, 's81')
    p4.c_issue(misc + 1)
    n = 0
    for p in range(3):
        for t in range(4):
            if n == G1:
                A(f's_waitcnt vmcnt({p4.vm.cnt("g1")})')
                A('s_barrier')
                p4.w0_begin(f'{name}_g1s')
                A('v_mov_b32 v4, 1')
                A('s_mov_b64 exec, 1')
                A('buffer_store_dword v4, off, s[40:43], s81 sc1')
                A('s_mov_b64 exec, -1')
                A.label(f'{name}_g1s')
                p4.w0n += 1
            if n == PAT:
                p4.c_check_pa_issue(misc + 1, 0)
            n += 1
            if p < 2:
                g0, g1, u0, u1 = acc(2 * p, t), acc(2 * p + 1, t), acc(5 + 2 * p, t), acc(6 + 2 * p, t)
                gelu_tile(A, misc, g0, u0, [u0, u0 + 1], T0)
                gelu_tile(A, misc, g1, u1, [u0 + 2, u0 + 3], T1)
                A(f'buffer_store_dwordx4 v[{u0}:{u0 + 3}], v{vL16}, s[40:43], s94 offen offset:{p * 2048}{ST}')
                p4.vm.issue('g1' if p == 0 else 'epi')
                A('s_add_u32 s94, s94, 147456' if t < 3 else f's_sub_u32 s94, s94, {3 * 147456}')
            else:
                g0, u0 = acc(4, t), acc(9, t)
                gelu_tile(A, misc, g0, u0, [u0, u0 + 1], T0 if t & 1 else T1)
                A(f'buffer_store_dwordx2 v[{u0}:{u0 + 1}], v{vL16}, s[40:43], s95 offen{ST}')
                p4.vm.issue('epi')
                A('s_add_u32 s95, s95, 147456')
    if PAT >= 12:
        p4.c_check_pa_issue(misc + 1, 0)
    ts_stamp(A, opts, 39)
    p4.pa_check(0)
    A('s_barrier')
    p4.first_loads()


def epilogue_A(A, name, acc, misc, opts, p4=None):
    fused = opts.get('fused')
    vL16 = misc
    T0, T1 = misc + 4, misc + 8
    ST = opts.get('st_mod', '')
    epi_common(A, misc)
    aW = 76
    aKV = 0
    A('s_lshl_b32 s97, s89, 11')
    A(f's_add_u32 s97, s97, {SPARE}')
    A(f'v_add_u32 v{T0}, s97, v{vL16}')
    A(f'ds_read_b128 a[{aW}:{aW + 3}], v{T0}')
    A(f'ds_read_b128 a[{aW + 4}:{aW + 7}], v{T0} offset:1024')
    A('s_lshl_b32 s93, s82, 1')
    A('s_add_u32 s93, s93, s92')
    A('s_add_u32 s93, s93, s89')
    A('s_add_u32 s93, s93, 10')
    A('s_lshl_b32 s93, s93, 10')
    A('s_add_u32 s94, s93, s91')
    A('s_lshl_b32 s92, s77, 7')
    A('s_add_u32 s92, s92, s90')
    A('s_lshl_b32 s92, s92, 10')
    A(f's_add_u32 s92, s92, {WS_Q}')
    QT = int(opts.get('qt', 3)) if p4 else -1

    def q_store():
        for t in range(4):
            q0 = acc(0, t)
            A(f'buffer_store_dwordx4 v[{q0}:{q0 + 3}], v{vL16}, s[40:43], s92 offen offset:{t * 1024}{ST}')
            if p4:
                p4.vm.issue()

    def pack(d, a, b):
        A(f'v_cvt_pk_bf16_f32 v{d}, v{a}, v{a + 1}')
        A(f'v_cvt_pk_bf16_f32 v{d + 1}, v{a + 2}, v{a + 3}')
        A(f'v_cvt_pk_bf16_f32 v{d + 2}, v{b}, v{b + 1}')
        A(f'v_cvt_pk_bf16_f32 v{d + 3}, v{b + 2}, v{b + 3}')
    if p4:
        p4.c_issue(misc + 1)
    for t in range(4):
        g0, g1, u0, u1 = acc(6, t), acc(7, t), acc(8, t), acc(9, t)
        gelu_tile(A, misc, g0, u0, [u0, u0 + 1], T0)
        gelu_tile(A, misc, g1, u1, [u0 + 2, u0 + 3], T1)
        A(f'buffer_store_dwordx4 v[{u0}:{u0 + 3}], v{vL16}, s[40:43], s94 offen{ST}')
        if p4:
            p4.vm.issue()
        if t < 3:
            A('s_add_u32 s94, s94, 147456')
    for t in range(4):
        q0, q1 = acc(0, t), acc(1, t)
        pack(q0, q0, q1)
    if QT < 0:
        q_store()
    for t in range(4):
        k0, k1 = acc(2, t), acc(3, t)
        pack(k0, k0, k1)
    A('s_waitcnt lgkmcnt(0)')
    for t in range(4):
        k0 = acc(2, t)
        p0, p1 = acc(1, t), acc(3, t)
        A(f'v_mfma_f32_16x16x32_bf16 v[{p0}:{p0 + 3}], a[{aW}:{aW + 3}], v[{k0}:{k0 + 3}], 0')
        A(f'v_mfma_f32_16x16x32_bf16 v[{p1}:{p1 + 3}], a[{aW + 4}:{aW + 7}], v[{k0}:{k0 + 3}], 0')
    for tp in (0, 2):
        for dt in range(2):
            a0, a1 = acc(4 + dt, tp), acc(4 + dt, tp + 1)
            pack(a0, a0, a1)
    ones = acc(4, 1)
    for r in range(4):
        A(f'v_mov_b32 v{ones + r}, 0x3f803f80')
    idr = acc(5, 1)
    assert acc(6, 1) == idr + 4
    A(f'v_lshrrev_b32 v{T0}, 4, v{vL16}')
    A(f'v_and_b32 v{T0 + 1}, 15, v{T0}')
    A(f'v_lshrrev_b32 v{T0 + 2}, 4, v{T0}')
    A(f'v_lshrrev_b32 v{T0 + 3}, 2, v{T0 + 1}')
    A(f'v_and_b32 v{T1}, 1, v{T0 + 1}')
    A(f'v_lshlrev_b32 v{T1}, 4, v{T1}')
    A(f'v_mov_b32 v{T1 + 1}, 0x3f80')
    A(f'v_lshlrev_b32 v{T1 + 1}, v{T1}, v{T1 + 1}')
    A(f'v_cmp_eq_u32 vcc, v{T0 + 2}, v{T0 + 3}')
    A(f'v_cndmask_b32 v{T1 + 1}, 0, v{T1 + 1}, vcc')
    A(f'v_and_b32 v{T1 + 2}, 2, v{T0 + 1}')
    A(f'v_cmp_eq_u32 vcc, 0, v{T1 + 2}')
    A(f'v_cndmask_b32 v{idr + 2}, 0, v{T1 + 1}, vcc')
    A(f'v_cndmask_b32 v{idr + 3}, v{T1 + 1}, 0, vcc')
    for r in (0, 1, 4, 5):
        A(f'v_mov_b32 v{idr + r}, 0')
    I = [idr + 2, idr]
    A(f's_mov_b32 s96, {f2u(LOG2E)}')
    A(f's_mov_b32 s97, {f2u(LOG2E)}')
    phi = [acc(8, 0), acc(8, 1), acc(8, 2), acc(8, 3)]
    EP = [acc(6, 0), acc(6, 2)]
    EN = [acc(6, 3), acc(4, 3)]
    TR = [[acc(9, 0), acc(9, 1), acc(9, 2), acc(9, 3)], [acc(2, 0), acc(2, 1), acc(2, 2), acc(2, 3)]]
    SC = [T0, T1]
    HT = int(opts.get('ht', 1))
    for t in range(4):
        if fused and t == HT:
            A('s_waitcnt vmcnt(0)')
            A('s_barrier')
            A('s_cmp_lg_u32 s87, 0')
            A(f's_cbranch_scc1 {name}_ehs')
            h_flag_addr(A, 's95')
            A(f'v_mov_b32 v{T1}, 3')
            A('s_mov_b64 exec, 1')
            A(f'buffer_store_dword v{T1}, v{vL16}, s[40:43], s95 offen sc1')
            A('s_mov_b64 exec, -1')
            A.label(f'{name}_ehs')
            p4.w0n += 1
        if p4 and t == int(opts.get('pata', 3)):
            p4.c_check_pa_issue(misc + 1, acc(7, 1))
        if t == QT:
            q_store()
        e = t & 1
        p0, p1 = acc(1, t), acc(3, t)
        P = [p0 + r for r in range(4)] + [p1 + r for r in range(4)]
        ep, en = EP[e], EN[e]
        mx, mn, tm, tn = SC[e], SC[e] + 1, SC[e] + 2, SC[e] + 3
        if opts.get('round_p'):
            for i in range(0, 8, 2):
                A(f'v_cvt_pk_bf16_f32 v{ep + i}, v{P[i]}, v{P[i + 1]}')
            for i in range(0, 8, 2):
                A(f'v_lshlrev_b32 v{P[i]}, 16, v{ep + i}')
                A(f'v_and_b32 v{P[i + 1]}, 0xffff0000, v{ep + i}')
        A(f'v_max3_f32 v{mx}, v{P[0]}, v{P[1]}, v{P[2]}')
        A(f'v_min3_f32 v{mn}, v{P[0]}, v{P[1]}, v{P[2]}')
        A(f'v_max3_f32 v{mx}, v{mx}, v{P[3]}, v{P[4]}')
        A(f'v_min3_f32 v{mn}, v{mn}, v{P[3]}, v{P[4]}')
        A(f'v_max3_f32 v{mx}, v{mx}, v{P[5]}, v{P[6]}')
        A(f'v_min3_f32 v{mn}, v{mn}, v{P[5]}, v{P[6]}')
        A(f'v_max_f32 v{mx}, v{mx}, v{P[7]}')
        A(f'v_min_f32 v{mn}, v{mn}, v{P[7]}')
        for sw in ('v_permlane16_swap_b32', 'v_permlane32_swap_b32'):
            A(f'v_mov_b32 v{tm}, v{mx}')
            A(f'v_mov_b32 v{tn}, v{mn}')
            A(f'{sw} v{mx}, v{tm}')
            A(f'{sw} v{mn}, v{tn}')
            A(f'v_max_f32 v{mx}, v{mx}, v{tm}')
            A(f'v_min_f32 v{mn}, v{mn}, v{tn}')
        A(f'v_mul_f32 v{tm}, s96, v{mn}')
        A(f'v_mul_f32 v{tn}, s96, v{mn}')
        A(f'v_mul_f32 v{mn}, s96, v{mx}')
        A(f'v_mul_f32 v{mx}, s96, v{mx}')
        for h in range(0, 8, 2):
            src = P[h]
            A(f'v_pk_fma_f32 v[{ep + h}:{ep + h + 1}], v[{src}:{src + 1}], s[96:97], v[{mx}:{mn}] neg_lo:[0,0,1] neg_hi:[0,0,1]')
            A(f'v_pk_fma_f32 v[{en + h}:{en + h + 1}], v[{src}:{src + 1}], s[96:97], v[{tm}:{tn}] neg_lo:[1,0,0] neg_hi:[1,0,0]')
        for i in range(8):
            A(f'v_exp_f32 v{ep + i}, v{ep + i}')
            A(f'v_exp_f32 v{en + i}, v{en + i}')
        A(f'v_pk_add_f32 v[{p0}:{p0 + 1}], v[{ep}:{ep + 1}], v[{ep + 2}:{ep + 3}]')
        A(f'v_pk_add_f32 v[{p0 + 2}:{p0 + 3}], v[{ep + 4}:{ep + 5}], v[{ep + 6}:{ep + 7}]')
        A(f'v_pk_add_f32 v[{p1}:{p1 + 1}], v[{en}:{en + 1}], v[{en + 2}:{en + 3}]')
        A(f'v_pk_add_f32 v[{p1 + 2}:{p1 + 3}], v[{en + 4}:{en + 5}], v[{en + 6}:{en + 7}]')
        A(f'v_pk_add_f32 v[{p0}:{p0 + 1}], v[{p0}:{p0 + 1}], v[{p0 + 2}:{p0 + 3}]')
        A(f'v_pk_add_f32 v[{p1}:{p1 + 1}], v[{p1}:{p1 + 1}], v[{p1 + 2}:{p1 + 3}]')
        A(f'v_add_f32 v{mx}, v{p0}, v{p0 + 1}')
        A(f'v_add_f32 v{mn}, v{p1}, v{p1 + 1}')
        for sw in ('v_permlane16_swap_b32', 'v_permlane32_swap_b32'):
            A(f'v_mov_b32 v{tm}, v{mx}')
            A(f'v_mov_b32 v{tn}, v{mn}')
            A(f'{sw} v{mx}, v{tm}')
            A(f'{sw} v{mn}, v{tn}')
            A(f'v_add_f32 v{mx}, v{mx}, v{tm}')
            A(f'v_add_f32 v{mn}, v{mn}, v{tn}')
        A(f'v_rcp_f32 v{tm}, v{mn}')
        A(f'v_rcp_f32 v{tn}, v{mn}')
        A(f'v_rcp_f32 v{mn}, v{mx}')
        A(f'v_rcp_f32 v{mx}, v{mx}')
        for h in range(0, 8, 2):
            A(f'v_pk_mul_f32 v[{ep + h}:{ep + h + 1}], v[{ep + h}:{ep + h + 1}], v[{mx}:{mn}]')
            A(f'v_pk_mul_f32 v[{en + h}:{en + h + 1}], v[{en + h}:{en + h + 1}], v[{tm}:{tn}]')
        for i in range(4):
            A(f'v_cvt_pk_bf16_f32 v{p0 + i}, v{ep + 2 * i}, v{ep + 2 * i + 1}')
            A(f'v_cvt_pk_bf16_f32 v{p1 + i}, v{en + 2 * i}, v{en + 2 * i + 1}')
        tr = TR[e]
        for F in range(4):
            src = p0 if F < 2 else p1
            ih = I[F & 1]
            A(f'v_mfma_f32_16x16x32_bf16 v[{tr[F]}:{tr[F] + 3}], v[{src}:{src + 3}], v[{ih}:{ih + 3}], 0')
        if t & 1:
            for tt in (t - 1, t):
                tr = TR[tt & 1]
                h = (tt & 1) * 2
                for F in range(4):
                    A(f'v_cvt_pk_bf16_f32 v{phi[F] + h}, v{tr[F]}, v{tr[F] + 1}')
                    A(f'v_cvt_pk_bf16_f32 v{phi[F] + h + 1}, v{tr[F] + 2}, v{tr[F] + 3}')
            tp = t - 1
            for F in range(4):
                for dt in range(3):
                    b = acc(4 + dt, tp) if dt < 2 else ones
                    c = aKV + (F * 3 + dt) * 4
                    cin = '0' if tp == 0 else f'a[{c}:{c + 3}]'
                    A(f'v_mfma_f32_16x16x32_bf16 a[{c}:{c + 3}], v[{phi[F]}:{phi[F] + 3}], v[{b}:{b + 3}], {cin}')
    if QT >= 4:
        q_store()
    A('s_mul_i32 s97, s87, 12288')
    A('s_add_u32 s97, s97, 65536')
    A(f'v_add_u32 v{T0}, s97, v{vL16}')
    for i in range(12):
        A(f'ds_write_b128 v{T0}, a[{aKV + 4 * i}:{aKV + 4 * i + 3}] offset:{i * 1024}')
    A('s_waitcnt lgkmcnt(0)')
    if p4:
        ts_stamp(A, opts, 39)
        p4.pa_check(acc(7, 1))
    A('s_barrier')
    A('s_lshl_b32 s96, s77, 3')
    A('s_add_u32 s96, s96, s86')
    A('s_mul_i32 s96, s96, 12288')
    A(f's_add_u32 s96, s96, {WS_KV}')
    A('s_mul_i32 s97, s88, 3072')
    A('s_add_u32 s96, s96, s97')
    A('s_mul_i32 s93, s89, 49152')
    A('s_add_u32 s97, s97, s93')
    A('s_add_u32 s97, s97, 65536')
    A(f'v_add_u32 v{T0}, s97, v{vL16}')
    for e in range(3):
        for p in range(4):
            b = 16 * e + 4 * p
            A(f'ds_read_b128 v[{b}:{b + 3}], v{T0} offset:{p * 12288 + e * 1024}')
    if p4:
        p4.first_loads()
        A('s_lshl_b32 s81, s78, 7')
        A('s_lshl_b32 s90, s86, 2')
        A('s_add_u32 s81, s81, s90')
        A(f's_add_u32 s81, s81, {WS_FLAG + FL_KV}')
    A('s_waitcnt lgkmcnt(0)')
    for e in range(3):
        b = 16 * e
        for h in (0, 2):
            A(f'v_pk_add_f32 v[{b + h}:{b + h + 1}], v[{b + h}:{b + h + 1}], v[{b + 4 + h}:{b + 5 + h}]')
            A(f'v_pk_add_f32 v[{b + 8 + h}:{b + 9 + h}], v[{b + 8 + h}:{b + 9 + h}], v[{b + 12 + h}:{b + 13 + h}]')
        for h in (0, 2):
            A(f'v_pk_add_f32 v[{b + h}:{b + h + 1}], v[{b + h}:{b + h + 1}], v[{b + 8 + h}:{b + 9 + h}]')
        A(f'buffer_store_dwordx4 v[{b}:{b + 3}], v{vL16}, s[40:43], s96 offen offset:{e * 1024}{ST}')
        if p4:
            p4.vm.issue('epi')
```

```python
from asmlib import Asm
from gen_k1b import WS_A, WS_Q, WS_KV, WS_G, WS_FLAG, FL_O, FL_P, FL_H, FL_KV, WS_P, WS_WF, WS_BYTES, f2u, LOG2E, ts_stamp, ts_store

KVL = 131072
P3_LDS = KVL + 32768
DPP = ' row_mask:0xf bank_mask:0xf'
ACC_OFF = 172


KSEQ = ([14 * c + i for c in range(4) for i in (0, 1, 6, 7, 10, 11, 12, 13)] +
        [14 * c + i for c in range(4) for i in (2, 3, 8, 9)] + [14 * c + i for c in range(4) for i in (4, 5)])


def sadd(reg, delta):
    return f's_add_u32 {reg}, {reg}, {delta}' if delta >= 0 else f's_sub_u32 {reg}, {reg}, {-delta}'


def wstep(j):
    return sadd('s48', (KSEQ[j + 1] - KSEQ[j]) * 65536) if j + 1 < 56 else 's_nop 0'


class Cnt:
    def __init__(self):
        self.n = 0
        self.pos = {}

    def issue(self, tag=None):
        self.n += 1
        if tag is not None:
            self.pos[tag] = self.n

    def cnt(self, tag):
        return self.n - self.pos[tag]


def kv_loads(opts, R):
    vL16, vL8 = R['vL16'], R['T0'] + 7
    LD = ' sc1' if opts.get('fused') else ''
    KV = 64
    S = []
    for p in range(8):
        S.append(('vm', [f'buffer_load_dwordx4 v[{KV + 6 * p}:{KV + 6 * p + 3}], v{vL16}, s[40:43], s72 offen{LD}'], None))
        S.append(('vm', [f'buffer_load_dwordx2 v[{KV + 6 * p + 4}:{KV + 6 * p + 5}], v{vL8}, s[40:43], s73 offen{LD}'] +
                  (['s_add_u32 s72, s72, 12288', 's_add_u32 s73, s73, 12288'] if p < 7 else []), ('kv', p)))
    return S


def side_stream(name, opts, R):
    S = []
    vL16 = R['vL16']
    KV = 64
    PB = 112
    WF = 128
    Q = 136
    T0 = R['T0']
    S.append(('until', R['QUSE']))
    S.append(('wvm', 'q'))
    for t in range(2):
        q = Q + 4 * t
        P = PB + 8 * t
        S.append(f'v_mfma_f32_16x16x32_bf16 v[{P}:{P + 3}], v[{WF}:{WF + 3}], v[{q}:{q + 3}], 0')
        S.append(f'v_mfma_f32_16x16x32_bf16 v[{P + 4}:{P + 7}], v[{WF + 4}:{WF + 7}], v[{q}:{q + 3}], 0')
    ep, en = 128, 136
    mx, mn, tm, tn = T0, T0 + 1, T0 + 2, T0 + 3

    def softmax(t):
        S = []
        P0 = PB + 8 * t
        P = [P0 + i for i in range(8)]
        S += [f'v_max3_f32 v{mx}, v{P[0]}, v{P[1]}, v{P[2]}',
              f'v_min3_f32 v{mn}, v{P[0]}, v{P[1]}, v{P[2]}',
              f'v_max3_f32 v{mx}, v{mx}, v{P[3]}, v{P[4]}',
              f'v_min3_f32 v{mn}, v{mn}, v{P[3]}, v{P[4]}',
              f'v_max3_f32 v{mx}, v{mx}, v{P[5]}, v{P[6]}',
              f'v_min3_f32 v{mn}, v{mn}, v{P[5]}, v{P[6]}',
              f'v_max_f32 v{mx}, v{mx}, v{P[7]}',
              f'v_min_f32 v{mn}, v{mn}, v{P[7]}']
        for sw in ('v_permlane16_swap_b32', 'v_permlane32_swap_b32'):
            S += [f'v_mov_b32 v{tm}, v{mx}', f'v_mov_b32 v{tn}, v{mn}',
                  f'{sw} v{mx}, v{tm}', f'{sw} v{mn}, v{tn}',
                  f'v_max_f32 v{mx}, v{mx}, v{tm}', f'v_min_f32 v{mn}, v{mn}, v{tn}']
        S += [f'v_mul_f32 v{mn}, s96, v{mn}', f'v_mul_f32 v{mx}, s96, v{mx}']
        for i in range(8):
            S.append(f'v_fma_f32 v{ep + i}, v{P[i]}, s96, -v{mx}')
            S.append(f'v_fma_f32 v{en + i}, -v{P[i]}, s96, v{mn}')
        for i in range(8):
            S.append(f'v_exp_f32 v{ep + i}, v{ep + i}')
            S.append(f'v_exp_f32 v{en + i}, v{en + i}')
        S += [f'v_add_f32 v{mx}, v{ep}, v{ep + 1}', f'v_add_f32 v{mn}, v{en}, v{en + 1}',
              f'v_add_f32 v{tm}, v{ep + 2}, v{ep + 3}', f'v_add_f32 v{tn}, v{en + 2}, v{en + 3}']
        for i in (4, 6):
            S += [f'v_add_f32 v{mx}, v{mx}, v{ep + i}', f'v_add_f32 v{mn}, v{mn}, v{en + i}',
                  f'v_add_f32 v{tm}, v{tm}, v{ep + i + 1}', f'v_add_f32 v{tn}, v{tn}, v{en + i + 1}']
        S += [f'v_add_f32 v{mx}, v{mx}, v{tm}', f'v_add_f32 v{mn}, v{mn}, v{tn}']
        for sw in ('v_permlane16_swap_b32', 'v_permlane32_swap_b32'):
            S += [f'v_mov_b32 v{tm}, v{mx}', f'v_mov_b32 v{tn}, v{mn}',
                  f'{sw} v{mx}, v{tm}', f'{sw} v{mn}, v{tn}',
                  f'v_add_f32 v{mx}, v{mx}, v{tm}', f'v_add_f32 v{mn}, v{mn}, v{tn}']
        S += [f'v_rcp_f32 v{mn}, v{mn}', f'v_rcp_f32 v{mx}, v{mx}']
        for i in range(8):
            S.append(f'v_mul_f32 v{ep + i}, v{ep + i}, v{mx}')
            S.append(f'v_mul_f32 v{en + i}, v{en + i}, v{mn}')
        p0, p1 = P0, P0 + 4
        for i in range(4):
            S.append(f'v_cvt_pk_bf16_f32 v{p0 + i}, v{ep + 2 * i}, v{ep + 2 * i + 1}')
            S.append(f'v_cvt_pk_bf16_f32 v{p1 + i}, v{en + 2 * i}, v{en + 2 * i + 1}')
        return S
    S += softmax(0)
    S.append(('until', R['KVUSE']))
    for p in range(1, 8):
        S.append(('wvm', ('kv', p)))
        for i in range(6):
            S.append(f'v_add_f32 v{KV + i}, v{KV + i}, v{KV + 6 * p + i}')
    S += [f'v_cvt_pk_bf16_f32 v{KV}, v{KV}, v{KV + 1}',
          f'v_cvt_pk_bf16_f32 v{KV + 1}, v{KV + 2}, v{KV + 3}',
          f'v_cvt_pk_bf16_f32 v{KV + 2}, v{KV + 4}, v{KV + 5}']
    S.append(('lg', f'ds_write_b64 v{T0 + 4}, v[{KV}:{KV + 1}]', None))
    S.append(('lg', f'ds_write_b32 v{T0 + 5}, v{KV + 2}', None))
    S.append(('markbar',))
    sm1 = softmax(1)
    S += sm1[:-40]
    KF = 88
    S.append(('waitbar',))
    for i in range(6):
        S.append(('lg', f'ds_read_b128 v[{KF + 4 * i}:{KF + 3 + 4 * i}], v{T0 + 6} offset:{i * 1024}', 'kf'))
    S += sm1[-40:]
    S.append(('wlg', 'kf'))
    for t in range(2):
        P0 = PB + 8 * t
        nb = 64 + 12 * t
        for b in range(2):
            for dt in range(3):
                kf = KF + 4 * (dt * 2 + b)
                d = nb + 4 * dt
                cin = '0' if b == 0 else f'v[{d}:{d + 3}]'
                S.append(f'v_mfma_f32_16x16x32_bf16 v[{d}:{d + 3}], v[{kf}:{kf + 3}], v[{P0 + 4 * b}:{P0 + 4 * b + 3}], {cin}')
    for t in range(2):
        P0 = PB + 8 * t
        P = [P0 + i for i in range(8)]
        nb = 64 + 12 * t
        dn = nb + 9
        S += [f'v_cvt_pk_bf16_f32 v{dn}, v{nb + 8}, v{nb + 8}',
              f'v_lshlrev_b32 v{dn}, 16, v{dn}',
              f'v_add_f32 v{dn}, {f2u(1e-6)}, v{dn}',
              f'v_cvt_pk_bf16_f32 v{dn}, v{dn}, v{dn}',
              f'v_lshlrev_b32 v{dn}, 16, v{dn}',
              f'v_rcp_f32 v{dn}, v{dn}']
        for i in range(8):
            S.append(f'v_mul_f32 v{nb + i}, v{nb + i}, v{dn}')
        for i in range(4):
            S.append(f'v_cvt_pk_bf16_f32 v{P[i]}, v{nb + 2 * i}, v{nb + 2 * i + 1}')
        S.append(('vm', f'buffer_store_dwordx4 v[{P[0]}:{P[3]}], v{vL16}, s[40:43], s78 offen sc1', 'ost'))
        if t == 0:
            S.append('s_add_u32 s78, s78, 147456')
    return S


def gen_k3(name, opts=None):
    opts = opts or {}
    A = Asm()
    A.raw(f'.globl {name}\n.p2align 8\n.type {name},@function\n{name}:')
    A('s_cmp_ge_u32 s2, 256')
    A(f's_cbranch_scc1 {name}_end')
    ts_stamp(A, opts, 64)
    A('s_load_dwordx2 s[60:61], s[0:1], 56')
    A('s_load_dwordx2 s[10:11], s[0:1], 88')
    A('v_lshrrev_b32 v1, 6, v0')
    A('v_readfirstlane_b32 s87, v1')
    A('s_waitcnt lgkmcnt(0)')
    A(f's_mov_b32 s40, s10\ns_mov_b32 s41, s11\ns_mov_b32 s42, {WS_BYTES}\ns_mov_b32 s43, 0x00020000')
    for ins in early_setup(170, 168):
        A(ins)
    for ins in early_dma(170):
        A(ins)
    emit_p3(A, name, opts)
    A.label(f'{name}_end')
    A('s_endpgm')
    return A.text(), 256, ACC_OFF


def dw_pattern(vd, t):
    return [f'v_mbcnt_lo_u32_b32 v{t}, -1, 0',
            f'v_mbcnt_hi_u32_b32 v{t}, -1, v{t}',
            f'v_lshrrev_b32 v{t + 1}, 3, v{t}',
            f'v_and_b32 v{vd}, 6, v{t + 1}',
            f'v_and_b32 v{t}, 7, v{t}',
            f'v_xor_b32 v{t}, v{t}, v{vd}',
            f'v_lshlrev_b32 v{t}, 4, v{t}',
            f'v_lshl_add_u32 v{vd}, v{t + 1}, 11, v{t}']


def early_setup(vd, t):
    return dw_pattern(vd, t) + [
        's_mov_b32 s16, s60', 's_mov_b32 s17, s61', f's_mov_b32 s18, {3584 * 2048}', 's_mov_b32 s19, 0x00020000',
        's_and_b32 s90, s2, 1',
        f's_mul_i32 s48, s90, {1792 * 2048}',
        's_and_b32 s91, s87, 3',
        's_lshl_b32 s91, s91, 14',
        's_add_u32 s48, s48, s91',
        's_lshr_b32 s91, s2, 5',
        's_lshl_b32 s91, s91, 8',
        's_add_u32 s48, s48, s91',
        's_lshr_b32 s91, s87, 2',
        's_xor_b32 s91, s91, s90',
        's_lshl_b32 s91, s91, 7',
        's_add_u32 s48, s48, s91',
        f's_add_u32 s48, s48, {KSEQ[0] * 65536}',
        's_lshl_b32 s62, s87, 10']


def early_dma(vd):
    out = []
    for s in range(2):
        for i in range(4):
            out += [f's_add_u32 m0, s62, {s * 32768 + i * 8192}',
                    f'buffer_load_dwordx4 v{vd}, s[16:19], s48 offen lds',
                    wstep(4 * s + i)]
    return out


def emit_p3(A, name, opts):
    fused = opts.get('fused')
    D = 6
    acc3 = 0
    accA = 64
    misc = 156
    vL16, vDW, vG, vPoll, vGo, vOut, vXW, vXR = [misc + i for i in range(8)]
    vRB = misc + 8
    aA = 0
    aB = 48
    T0 = 144
    KCHK = int(opts.get('kchk', 5)) if fused else 0
    R = dict(vL16=vL16, T0=T0, QUSE=int(opts.get('quse', 3)), KVUSE=KCHK + int(opts.get('kvlat', 5)))
    LDA = ' sc1' if fused else ''
    A('s_load_dwordx2 s[4:5], s[0:1], 24')
    A('s_load_dwordx2 s[8:9], s[0:1], 72')
    A('s_load_dwordx2 s[12:13], s[0:1], 80')
    A('v_mbcnt_lo_u32_b32 v0, -1, 0')
    A('v_mbcnt_hi_u32_b32 v0, -1, v0')
    A('s_and_b32 s90, s2, 7')
    A('s_lshr_b32 s91, s2, 3')
    A('s_and_b32 s84, s90, 1')
    A('s_lshr_b32 s92, s90, 1')
    A('s_lshl_b32 s92, s92, 2')
    A('s_and_b32 s93, s91, 3')
    A('s_add_u32 s86, s92, s93')
    A('s_lshr_b32 s85, s91, 2')
    A('s_and_b32 s88, s87, 3')
    A('s_lshr_b32 s89, s87, 2')
    A(f'v_lshlrev_b32 v{vL16}, 4, v0')
    for ins in dw_pattern(vDW, 2):
        A(ins)
    A('s_lshl_b32 s90, s85, 8')
    A('s_lshl_b32 s91, s84, 7')
    A('s_add_u32 s83, s90, s91')
    A('s_lshl_b32 s49, s87, 14')
    A('s_add_u32 s49, s49, s83')
    A('s_lshl_b32 s92, s86, 3')
    A('s_lshl_b32 s93, s88, 1')
    A('s_add_u32 s92, s92, s93')
    A('s_add_u32 s94, s92, s89')
    A('s_xor_b32 s95, s94, 1')
    A('s_lshl_b32 s93, s89, 10')
    A('s_mul_i32 s54, s94, 147456')
    A('s_add_u32 s54, s54, s93')
    A('s_mul_i32 s55, s95, 147456')
    A('s_add_u32 s55, s55, s93')
    A(f's_mul_i32 s93, s84, {56 * 1024}')
    A('s_add_u32 s50, s54, s93')
    A('s_add_u32 s51, s55, s93')
    A(f's_add_u32 s54, s54, {112 * 1024}')
    A(f's_add_u32 s55, s55, {112 * 1024}')
    vm, lg = Cnt(), Cnt()
    NS3 = 14

    def dma(s, i):
        if s < NS3:
            return [f's_add_u32 m0, s62, {(s % 4) * 32768 + i * 8192}',
                    f'buffer_load_dwordx4 v{vDW}, s[16:19], s48 offen lds',
                    wstep(4 * s + i)]
        return [f's_add_u32 m0, s62, {(s % 4) * 32768 + i * 8192}',
                f'buffer_load_dwordx4 v{vDW}, s[20:23], s49 offen lds',
                f's_add_u32 s49, s49, {64 * 2048}']

    def a_load(i):
        r = aA + (i % D) * 8
        if i < 28:
            return [f'buffer_load_dwordx4 a[{r}:{r + 3}], v{vL16}, s[40:43], s50 offen{LDA}',
                    f'buffer_load_dwordx4 a[{r + 4}:{r + 7}], v{vL16}, s[40:43], s51 offen{LDA}',
                    's_add_u32 s50, s50, 2048', 's_add_u32 s51, s51, 2048']
        return [f'buffer_load_dwordx4 a[{r}:{r + 3}], v{vL16}, s[40:43], s54 offen sc1',
                f'buffer_load_dwordx4 a[{r + 4}:{r + 7}], v{vL16}, s[40:43], s55 offen sc1',
                's_add_u32 s54, s54, 2048', 's_add_u32 s55, s55, 2048']

    def E(r):
        if opts.get('k3_no_mfma') and r.startswith('v_mfma'):
            return
        A(r)

    def issue_a(i):
        for ins in a_load(i):
            E(ins)
        vm.issue(); vm.issue(('A', i))

    def issue_w(s):
        for i in range(4):
            for ins in dma(s, i):
                E(ins)
            vm.issue(('W', s))

    for s in range(2):
        for i in range(4):
            vm.issue(('W', s))
    if not fused:
        for i in range(4):
            issue_a(i)
        issue_w(2)
        for i in range(4, D):
            issue_a(i)
        issue_w(3)
    A('v_lshrrev_b32 v2, 2, v0')
    A('v_lshrrev_b32 v3, 1, v2')
    A('v_and_b32 v3, 3, v3')
    A('v_and_b32 v4, 3, v0')
    A('v_lshlrev_b32 v4, 3, v4')
    A('v_lshl_add_u32 v4, v2, 7, v4')
    A('s_lshl_b32 s63, s89, 13')
    A('v_add_u32 v4, s63, v4')
    for T in range(4):
        A(f'v_xor_b32 v5, {T}, v3')
        A(f'v_lshl_add_u32 v{vRB + T}, v5, 5, v4')
        A(f'v_add_u32 v{vRB + 4 + T}, 0x10000, v{vRB + T}')
    A('s_lshl_b32 s63, s89, 12')
    A('s_lshl_b32 s90, s87, 12')
    A(f's_add_u32 s90, s90, {KVL}')
    A(f'v_add_u32 v{vXW}, s90, v{vL16}')
    A('s_xor_b32 s90, s90, 16384')
    A(f'v_add_u32 v{vXR}, s90, v{vL16}')
    A('v_and_b32 v2, 15, v0')
    A(f'v_lshlrev_b32 v{vGo}, 2, v2')
    A('s_lshl_b32 s52, s94, 6')
    A(f's_add_u32 s52, s52, {WS_G}')
    A('s_lshr_b32 s53, s86, 1')
    A('s_lshl_b32 s53, s53, 7')
    A(f's_add_u32 s53, s53, {WS_FLAG + FL_O}')
    A('s_lshl_b32 s90, s86, 3')
    A('s_add_u32 s90, s90, s85')
    A('s_lshl_b32 s56, s90, 7')
    A(f's_add_u32 s56, s56, {WS_FLAG + FL_P}')
    A('s_lshl_b32 s91, s90, 16')
    A(f's_add_u32 s91, s91, {WS_P}')
    A('s_and_b32 s93, s94, 7')
    A('s_lshl_b32 s93, s93, 12')
    A('s_add_u32 s91, s91, s93')
    A('s_lshl_b32 s93, s84, 15')
    A('s_add_u32 s58, s91, s93')
    A('s_xor_b32 s93, s93, 32768')
    A('s_add_u32 s57, s91, s93')
    A('v_lshrrev_b32 v3, 4, v0')
    A('v_lshlrev_b32 v3, 3, v3')
    A('v_lshl_add_u32 v3, v2, 11, v3')
    A('s_lshl_b32 s93, s94, 15')
    A('s_add_u32 s93, s93, s83')
    A(f'v_add_u32 v{vOut}, s93, v3')
    A('s_and_b32 s90, s2, 31')
    A('s_lshr_b32 s91, s2, 5')
    A('s_lshl_b32 s70, s90, 11')
    A(f's_add_u32 s70, s70, {WS_WF}')
    A('s_lshl_b32 s92, s91, 4')
    A('s_lshl_b32 s93, s87, 1')
    A('s_add_u32 s92, s92, s93')
    A('s_lshl_b32 s71, s90, 7')
    A('s_add_u32 s71, s71, s92')
    A('s_lshl_b32 s71, s71, 10')
    A(f's_add_u32 s71, s71, {WS_Q}')
    A('s_mul_i32 s78, s92, 147456')
    A('s_add_u32 s93, s90, 112')
    A('s_lshl_b32 s93, s93, 10')
    A('s_add_u32 s78, s78, s93')
    A('s_lshr_b32 s92, s87, 1')
    A('s_and_b32 s93, s87, 1')
    A('s_mul_i32 s72, s90, 98304')
    A(f's_add_u32 s72, s72, {WS_KV}')
    A('s_mul_i32 s94, s92, 3072')
    A('s_add_u32 s72, s72, s94')
    A('s_lshl_b32 s94, s93, 9')
    A('s_add_u32 s73, s72, s94')
    A('s_add_u32 s73, s73, 1024')
    A('s_lshl_b32 s94, s93, 11')
    A('s_add_u32 s72, s72, s94')
    A('s_lshr_b32 s94, s92, 1')
    A('s_lshl_b32 s94, s94, 10')
    A('s_and_b32 s95, s92, 1')
    A('s_lshl_b32 s95, s95, 3')
    A('s_add_u32 s94, s94, s95')
    A(f's_add_u32 s94, s94, {KVL}')
    A('s_lshl_b32 s95, s93, 12')
    A('s_add_u32 s74, s94, s95')
    A('s_lshl_b32 s95, s93, 9')
    A('s_add_u32 s75, s94, s95')
    A('s_add_u32 s75, s75, 2048')
    A('s_lshl_b32 s79, s91, 7')
    A('s_lshl_b32 s93, s90, 2')
    A('s_add_u32 s79, s79, s93')
    A(f's_add_u32 s79, s79, {WS_FLAG + FL_O}')
    A('s_lshl_b32 s93, s84, 2')
    A('s_add_u32 s80, s56, s93')
    A(f's_mov_b32 s96, {f2u(LOG2E)}')
    A('s_lshr_b32 s92, s90, 1')
    A('s_lshl_b32 s76, s92, 7')
    A(f's_add_u32 s76, s76, {WS_FLAG + FL_KV}')
    A('s_lshr_b32 s93, s92, 1')
    A('s_lshl_b32 s93, s93, 2')
    A('s_and_b32 s92, s92, 1')
    A('s_add_u32 s93, s93, s92')
    A('s_add_u32 s93, s93, 2')
    A('s_lshl_b32 s93, s93, 2')
    A('s_lshl_b32 s92, s91, 7')
    A('s_add_u32 s77, s92, s93')
    A('s_lshr_b32 s92, s86, 1')
    A('s_lshl_b32 s92, s92, 7')
    A('s_lshl_b32 s93, s84, 6')
    A('s_add_u32 s82, s92, s93')
    A(f'v_add_u32 v{T0 + 4}, s74, v{vL16}')
    A(f'v_lshrrev_b32 v{T0 + 5}, 1, v0')
    A(f'v_lshlrev_b32 v{T0 + 5}, 4, v{T0 + 5}')
    A(f'v_and_b32 v{T0 + 6}, 1, v0')
    A(f'v_lshl_add_u32 v{T0 + 5}, v{T0 + 6}, 2, v{T0 + 5}')
    A(f'v_add_u32 v{T0 + 5}, s75, v{T0 + 5}')
    A(f'v_add_u32 v{T0 + 6}, {KVL}, v{vL16}')
    A(f'v_lshlrev_b32 v{T0 + 7}, 3, v0')
    A('s_waitcnt lgkmcnt(0)')
    A('s_mov_b32 s20, s4\ns_mov_b32 s21, s5\ns_mov_b32 s22, %d\ns_mov_b32 s23, 0x00020000' % (1024 * 2048))
    A('s_mov_b32 s24, s8\ns_mov_b32 s25, s9\ns_mov_b32 s26, 0x400000\ns_mov_b32 s27, 0x00020000')
    A('s_mov_b32 s28, s12\ns_mov_b32 s29, s13\ns_mov_b32 s30, 256\ns_mov_b32 s31, 0x00020000')

    noside = opts.get('no_side')
    side = [] if noside else side_stream(name, opts, R)
    st = dict(i=0, nbar=0, wantbar=None)

    def emit_side(it, k):
        while k > 0 and st['i'] < len(side):
            x = side[st['i']]
            if isinstance(x, str):
                E(x)
                k -= 1
            elif x[0] == 'vm':
                E(x[1]); vm.issue(x[2]); k -= 1
            elif x[0] == 'lg':
                E(x[1]); lg.issue(x[2]); k -= 1
            elif x[0] == 'wvm':
                A(f's_waitcnt vmcnt({min(63, vm.cnt(x[1]))})')
            elif x[0] == 'wlg':
                A(f's_waitcnt lgkmcnt({min(15, lg.cnt(x[1]))})')
            elif x[0] == 'until':
                if it < x[1]:
                    return
            elif x[0] == 'markbar':
                st['wantbar'] = st['nbar'] + 1
            elif x[0] == 'waitbar':
                if st['nbar'] < st['wantbar']:
                    return
            st['i'] += 1

    def issue_q():
        for t in range(2):
            A(f'buffer_load_dwordx4 v[{128 + 4 * t}:{128 + 4 * t + 3}], v{vL16}, s[40:43], s70 offen offset:{t * 1024}{LDA}')
            vm.issue()
        for t in range(2):
            A(f'buffer_load_dwordx4 v[{136 + 4 * t}:{136 + 4 * t + 3}], v{vL16}, s[40:43], s71 offen offset:{t * 1024}{LDA}')
            vm.issue('q')

    def stage_of(i):
        return i >> 1 if i < 28 else NS3 + ((i - 28) >> 2)

    def is_last(i):
        return i + 1 < NI and stage_of(i + 1) != stage_of(i)

    def b_reads(i, T):
        out = []
        slot = stage_of(i) % 4
        for a in range(2):
            base = vRB + (T & 3) + (4 if slot >= 2 else 0)
            if i < 28:
                r = aB + T * 4 + 2 * a
                off = (slot & 1) * 32768 + (i & 1) * 16384 + (T >> 2) * 4096 + a * 2048
            else:
                m = i - 28
                r = aB + (m & 1) * 16 + T * 4 + 2 * a
                off = (slot & 1) * 32768 + (m & 3) * 8192 + a * 2048
            out.append(f'ds_read_b64_tr_b16 a[{r}:{r + 1}], v{base} offset:{off}')
        return out

    NI = 44
    NST = 18
    marks = {}

    def w0_begin(lab):
        A('s_cmp_lg_u32 s87, 0')
        A(f's_cbranch_scc1 {lab}')

    def signal(soff, lab):
        w0_begin(lab)
        A(f'v_mov_b32 v{vPoll}, 1')
        A('s_mov_b64 exec, 1')
        A(f'buffer_store_dword v{vPoll}, v{vGo}, s[40:43], {soff} offen sc1')
        A('s_mov_b64 exec, -1')
        A.label(lab)

    def poll_load(soff, mask):
        if mask == 'oh':
            A(f'v_lshrrev_b32 v{vPoll}, 9, v{vL16}')
            A(f'v_mul_u32_u24 v{vPoll}, {FL_H - FL_O - 128}, v{vPoll}')
            A(f'v_lshrrev_b32 v{vG}, 2, v{vL16}')
            A(f'v_add_u32 v{vPoll}, v{vPoll}, v{vG}')
        else:
            A(f'v_lshrrev_b32 v{vPoll}, 2, v{vL16}')
            A(f'v_and_b32 v{vPoll}, {mask * 4}, v{vPoll}')
        A(f'buffer_load_dword v{vPoll}, v{vPoll}, s[40:43], {soff} offen sc1')

    def poll_issue(tag, soff, mask, lab):
        w0_begin(lab)
        poll_load(soff, mask)
        A.label(lab)
        marks[tag] = vm.n

    def poll_check(tag, soff, mask, lab):
        w0_begin(f'{lab}_rdy')
        A(f's_waitcnt vmcnt({min(63, vm.n - marks[tag])})')
        A(f'v_cmp_ne_u32 vcc, 0, v{vPoll}')
        A('s_cmp_eq_u64 vcc, -1')
        A(f's_cbranch_scc1 {lab}_rdy')
        A('s_mov_b32 s91, 40000')
        A.label(f'{lab}_spin')
        A('s_sleep 3')
        poll_load(soff, mask)
        A('s_waitcnt vmcnt(0)')
        A(f'v_cmp_ne_u32 vcc, 0, v{vPoll}')
        A('s_cmp_eq_u64 vcc, -1')
        A(f's_cbranch_scc1 {lab}_rdy')
        A('s_sub_u32 s91, s91, 1')
        A('s_cmp_lg_u32 s91, 0')
        A(f's_cbranch_scc1 {lab}_spin')
        A.flush_hazards()
        A.label(f'{lab}_rdy')

    OMASK = 'oh' if fused else 31
    if fused:
        A('s_waitcnt vmcnt(0) lgkmcnt(0)')
        A('s_barrier')
        signal('s81', f'{name}_hs')
        ts_stamp(A, opts, 64)
        issue_w(2)
        issue_w(3)
        w0_begin(f'{name}_h_rdy')
        A('v_cmp_gt_u32 vcc, 16, v0')
        A(f'v_add_u32 v2, s82, v{vGo}')
        A('v_mov_b32 v3, s77')
        A('v_cndmask_b32 v2, v3, v2, vcc')
        A('v_cmp_gt_u32 vcc, 32, v0')
        A('v_and_b32 v3, 127, v3')
        A('v_cndmask_b32 v2, v3, v2, vcc')
        A('v_mov_b32 v3, 0')
        A('s_mov_b32 s91, 40000')
        A(f's_mov_b32 s90, {WS_FLAG + FL_H}')
        A.label(f'{name}_h_spin')
        A(f'buffer_load_dword v4, v3, s[28:31], 0 offen sc1')
        A('s_waitcnt vmcnt(0)')
        A(f'buffer_load_dword v{vPoll}, v2, s[40:43], s90 offen sc1')
        A('v_lshrrev_b32 v4, 24, v4')
        A('v_cmp_ne_u32 s[92:93], 0, v4')
        A('s_waitcnt vmcnt(0)')
        A(f'v_cmp_ne_u32 vcc, 0, v{vPoll}')
        A('s_and_b64 vcc, vcc, s[92:93]')
        A('s_cmp_eq_u64 vcc, -1')
        A(f's_cbranch_scc1 {name}_h_rdy')
        A('s_sleep 2')
        A('s_sub_u32 s91, s91, 1')
        A('s_cmp_lg_u32 s91, 0')
        A(f's_cbranch_scc1 {name}_h_spin')
        A.flush_hazards()
        A.label(f'{name}_h_rdy')
        A('s_barrier')
        for i in range(D):
            issue_a(i)
            if i == 1 and not noside:
                issue_q()
    else:
        if not noside:
            issue_q()
    if not fused:
        A(f's_waitcnt vmcnt({vm.cnt(("W", 0))})')
        A('s_barrier')
    ts_stamp(A, opts, 65)
    for T in range(8):
        for ins in b_reads(0, T):
            A(ins)
            lg.issue(('B', 0, T))
    OSIG = int(opts.get('osig', 19))
    OPOLL, OCHK = OSIG + 3, OSIG + 4
    PSIG = int(opts.get('psig', 34))
    PPOLL, PCHK = int(opts.get('ppoll', 37)), int(opts.get('pchk', 39))
    XBAR = (PSIG, PCHK, OSIG, OCHK) + ((KCHK,) if fused else ())
    XLB = (29, 30)
    rate = int(opts.get('rate', 4))
    pend = []
    nexta = D
    kvl = []
    RX = 96
    PL = 112
    for it in range(NI):
        s = stage_of(it)
        last = is_last(it)
        drain = last or it in XLB
        bar = drain or it in XBAR
        w = vm.cnt(('A', it))
        if last:
            w = min(w, vm.cnt(('W', s + 1)))
        if it == PSIG:
            w = min(w, vm.cnt('pst'))
        if it == OSIG and not noside:
            assert st['i'] == len(side), (st['i'], len(side))
            w = min(w, vm.cnt('ost'))
        if drain:
            A(f's_waitcnt vmcnt({min(w, 63)}) lgkmcnt(0)')
        else:
            A(f's_waitcnt vmcnt({min(w, 63)})')
        if it == 14:
            ts_stamp(A, opts, 66)
        if it == 28:
            ts_stamp(A, opts, 67)
        if it == OCHK and not noside:
            poll_check('o', 's53', OMASK, f'{name}_oc')
        if it == PCHK:
            poll_check('p', 's56', 1, f'{name}_pc')
        if it == KCHK and fused and not noside:
            poll_check('k', 's76', 7, f'{name}_kc')
        if bar:
            A('s_barrier')
        if it == KCHK and not noside:
            kvl = kv_loads(opts, R)
        if it == KCHK - 2 and fused and not noside:
            poll_issue('k', 's76', 7, f'{name}_kp')
        if last:
            st['nbar'] += 1
            if s + 4 < NST:
                pend += [(s + 4, i) for i in range(4)]
        if it == PSIG:
            signal('s80', f'{name}_ps')
        if it == OSIG and not noside:
            signal('s79', f'{name}_os')
        if it == 27:
            for T in range(8):
                A(f'v_subrev_u32 v{vRB + T}, s63, v{vRB + T}')
        if it == OPOLL and not noside:
            poll_issue('o', 's53', OMASK, f'{name}_op')
        if it == PPOLL:
            poll_issue('p', 's56', 1, f'{name}_pp')
        if it == OCHK + 1:
            A(f'buffer_load_dword v{vG}, v{vGo}, s[40:43], s52 offen sc1')
            vm.issue('g')
        ar = aA + (it % D) * 8
        extra = []
        if it == 28:
            extra = [None] * 2 + [('lg', [f'ds_write_b128 v{vXW}, v[{acc3 + (12 + q) * 4}:{acc3 + (12 + q) * 4 + 3}] offset:{q * 1024}']) for q in range(4)]
        if it == 29:
            extra = [('lg', [f'ds_read_b128 v[{RX + 4 * q}:{RX + 4 * q + 3}], v{vXR} offset:{q * 1024}']) for q in range(4)]
        if it == 30:
            for q in range(4):
                c = acc3 + (4 + q) * 4
                extra.append(('vm', [f'v_add_f32 v{c + r}, v{c + r}, v{RX + 4 * q + r}' for r in range(4)] + [
                                     f'buffer_store_dwordx4 v[{c}:{c + 3}], v{vL16}, s[40:43], s57 offen offset:{q * 1024} sc1'], 'pst'))
            extra += [('lg', [f'ds_write_b128 v{vXW}, v[{acc3 + (8 + q) * 4}:{acc3 + (8 + q) * 4 + 3}] offset:{q * 1024}']) for q in range(4)]
        if it == 31:
            extra = [('lg', [f'ds_read_b128 v[{RX + 4 * q}:{RX + 4 * q + 3}], v{vXR} offset:{q * 1024}'], 'x2') for q in range(4)]
        if it == 33:
            for q in range(4):
                c = acc3 + q * 4
                extra.append(('v', [f'v_add_f32 v{c + r}, v{c + r}, v{RX + 4 * q + r}' for r in range(4)]))
        if it == PCHK:
            extra = [('vm', [f'buffer_load_dwordx4 v[{PL + 4 * q}:{PL + 4 * q + 3}], v{vL16}, s[40:43], s58 offen offset:{q * 1024} sc1'], 'pld') for q in range(4)]

        def pop_extra():
            if extra:
                x = extra.pop(0)
                if x is None:
                    return
                for ins in x[1]:
                    E(ins)
                if x[0] == 'vm':
                    vm.issue(x[2])
                elif x[0] == 'lg':
                    lg.issue(x[2] if len(x) > 2 else None)

        def pop_dma():
            if pend:
                s2, i2 = pend.pop(0)
                for ins in dma(s2, i2):
                    E(ins)
                vm.issue(('W', s2))
        if it < 28:
            for T in range(8):
                b = aB + T * 4
                if not drain:
                    A(f's_waitcnt lgkmcnt({min(15, lg.cnt(("B", it, T)))})')
                for u in range(2):
                    c = acc3 + (u * 8 + T) * 4
                    cin = '0' if it == 0 else f'v[{c}:{c + 3}]'
                    E(f'v_mfma_f32_16x16x32_bf16 v[{c}:{c + 3}], a[{b}:{b + 3}], a[{ar + 4 * u}:{ar + 4 * u + 3}], {cin}')
                    if u == 0:
                        emit_side(it, rate)
                    elif kvl:
                        x = kvl.pop(0)
                        for ins in x[1]:
                            E(ins)
                        vm.issue(x[2])
                if it + 1 < 28 or T < 4:
                    for ins in b_reads(it + 1, T):
                        E(ins)
                        lg.issue(('B', it + 1, T))
                if T in (1, 5):
                    pop_dma()
        else:
            m = it - 28
            for T in range(4):
                b = aB + (m & 1) * 16 + T * 4
                if not drain:
                    A(f's_waitcnt lgkmcnt({min(15, lg.cnt(("B", it, T)))})')
                for u in range(2):
                    c = accA + (u * 4 + T) * 4
                    cin = '0' if m == 0 else f'v[{c}:{c + 3}]'
                    E(f'v_mfma_f32_16x16x32_bf16 v[{c}:{c + 3}], a[{b}:{b + 3}], a[{ar + 4 * u}:{ar + 4 * u + 3}], {cin}')
                    if u == 0 and it + 1 < NI:
                        for ins in b_reads(it + 1, T):
                            E(ins)
                            lg.issue(('B', it + 1, T))
                    pop_extra()
                if T in (1, 3):
                    pop_dma()
        assert not extra
        k = 0
        while nexta <= it + D and nexta < NI and (nexta < 28 or it >= OCHK) and k < 2:
            for ins in a_load(nexta):
                E(ins)
            vm.issue(); vm.issue(('A', nexta))
            nexta += 1
            k += 1
    ts_stamp(A, opts, 68)
    t0, t1, omg = 128, 129, 130
    for T in range(4):
        A(f'ds_write_b128 v{vXW}, v[{accA + 16 + 4 * T}:{accA + 19 + 4 * T}] offset:{T * 1024}')
    g = vG
    A(f'v_sub_f32 v{omg}, 1.0, v{g}')
    A(f'v_cvt_pk_bf16_f32 v{omg}, v{omg}, v{omg}')
    A(f'v_lshlrev_b32 v{omg}, 16, v{omg}')
    A('s_waitcnt lgkmcnt(0)')
    A('s_barrier')
    for i in range(4):
        A(f'ds_read_b128 v[{RX + 4 * i}:{RX + 4 * i + 3}], v{vXR} offset:{i * 1024}')
    A('s_waitcnt vmcnt(0)')
    for T in range(4):
        for h in (0, 2):
            c = acc3 + 4 * T + h
            A(f'v_pk_add_f32 v[{c}:{c + 1}], v[{c}:{c + 1}], v[{PL + 4 * T + h}:{PL + 4 * T + h + 1}]')

    def rnd_scale(c, sc):
        A(f'v_cvt_pk_bf16_f32 v{t0}, v{c}, v{c + 1}')
        A(f'v_cvt_pk_bf16_f32 v{t1}, v{c + 2}, v{c + 3}')
        A(f'v_lshlrev_b32 v{c}, 16, v{t0}')
        A(f'v_and_b32 v{c + 1}, 0xffff0000, v{t0}')
        A(f'v_lshlrev_b32 v{c + 2}, 16, v{t1}')
        A(f'v_and_b32 v{c + 3}, 0xffff0000, v{t1}')
        for r in range(4):
            A(f'v_mul_f32 v{c + r}, v{sc}, v{c + r}')
        A(f'v_cvt_pk_bf16_f32 v{t0}, v{c}, v{c + 1}')
        A(f'v_cvt_pk_bf16_f32 v{t1}, v{c + 2}, v{c + 3}')
        A(f'v_lshlrev_b32 v{c}, 16, v{t0}')
        A(f'v_and_b32 v{c + 1}, 0xffff0000, v{t0}')
        A(f'v_lshlrev_b32 v{c + 2}, 16, v{t1}')
        A(f'v_and_b32 v{c + 3}, 0xffff0000, v{t1}')
    for T in range(4):
        rnd_scale(acc3 + 4 * T, omg)
    A('s_waitcnt lgkmcnt(0)')
    for T in range(4):
        cb = acc3 + T * 4
        ca = accA + T * 4
        for h in (0, 2):
            A(f'v_pk_add_f32 v[{ca + h}:{ca + h + 1}], v[{ca + h}:{ca + h + 1}], v[{RX + 4 * T + h}:{RX + 4 * T + h + 1}]')
        rnd_scale(ca, g)
        for r in range(4):
            A(f'v_add_f32 v{cb + r}, v{cb + r}, v{ca + r}')
        A(f'v_cvt_pk_bf16_f32 v{cb}, v{cb}, v{cb + 1}')
        A(f'v_cvt_pk_bf16_f32 v{cb + 1}, v{cb + 2}, v{cb + 3}')
        A(f'buffer_store_dwordx2 v[{cb}:{cb + 1}], v{vOut}, s[24:27], 0 offen offset:{T * 32}')
    ts_store(A, opts, 1, [65, 66, 67, 68, 59, 60] if opts.get('clk3') else [64, 65, 66, 67, 68])
    if fused:
        ts_store(A, opts, 0, [36, 37, 38, 39])
    if opts.get('clk3'):
        A('v_mov_b32 v0, s61\nv_mov_b32 v1, s69\nbuffer_store_dwordx2 v[0:1], v8, s[40:43], s3 offen offset:24')
```

```python
from gen_k1b import WS_A, WS_Q, WS_KV, WS_G, WS_FLAG, FL_O, FL_P, FL_H, FL_KV, WS_P, WS_WF, WS_BYTES, f2u, LOG2E, ts_stamp, ts_store
from gen_p3 import KSEQ, sadd, wstep, Cnt, dw_pattern, early_setup, early_dma, KVL

SPIN = 40000


def pre_scalars():
    kh, mt, n128, t0, t1, t2, t3 = 's67', 's68', 's69', 's44', 's45', 's46', 's47'
    L = []
    a = L.append
    a('s_load_dwordx2 s[24:25], s[0:1], 72')
    a('s_mov_b32 s26, 0x400000'); a('s_mov_b32 s27, 0x00020000')
    a('s_mov_b32 s20, s10'); a('s_mov_b32 s21, s11'); a(f's_mov_b32 s22, {1024 * 2048}'); a('s_mov_b32 s23, 0x00020000')
    a('s_mov_b32 s28, s96'); a('s_mov_b32 s29, s97'); a('s_mov_b32 s30, 256'); a('s_mov_b32 s31, 0x00020000')
    a(f's_and_b32 {kh}, s2, 1')
    a(f's_and_b32 {t0}, s2, 6')
    a(f's_lshl_b32 {t0}, {t0}, 1')
    a(f's_lshr_b32 {t1}, s2, 3')
    a(f's_and_b32 {t1}, {t1}, 3')
    a(f's_add_u32 {mt}, {t0}, {t1}')
    a(f's_lshr_b32 {n128}, s2, 5')
    a(f's_lshl_b32 {t0}, {n128}, 8')
    a(f's_lshl_b32 {t1}, {kh}, 7')
    a(f's_add_u32 s59, {t0}, {t1}')
    a('s_lshl_b32 s49, s87, 14')
    a('s_add_u32 s49, s49, s59')
    a(f's_lshl_b32 {t0}, {mt}, 3')
    a(f's_lshl_b32 {t1}, s88, 1')
    a(f's_add_u32 {t0}, {t0}, {t1}')
    a(f's_add_u32 {t2}, {t0}, s89')
    a(f's_xor_b32 {t3}, {t2}, 1')
    a(f's_lshl_b32 {t1}, s89, 10')
    a(f's_mul_i32 s54, {t2}, 147456')
    a(f's_add_u32 s54, s54, {t1}')
    a(f's_mul_i32 s55, {t3}, 147456')
    a(f's_add_u32 s55, s55, {t1}')
    a(f's_mul_i32 {t1}, {kh}, {56 * 1024}')
    a(f's_add_u32 {t1}, {t1}, {KSEQ[0] * 1024}')
    a(f's_add_u32 s50, s54, {t1}')
    a(f's_add_u32 s51, s55, {t1}')
    a(f's_add_u32 s54, s54, {112 * 1024}')
    a(f's_add_u32 s55, s55, {112 * 1024}')
    a(f's_lshl_b32 s52, {t2}, 6')
    a(f's_add_u32 s52, s52, {WS_G}')
    a(f's_lshl_b32 {t1}, {t2}, 15')
    a(f's_add_u32 s59, s59, {t1}')
    a(f's_lshr_b32 s53, {mt}, 1')
    a('s_lshl_b32 s53, s53, 7')
    a(f's_lshl_b32 {t1}, {kh}, 6')
    a(f's_add_u32 s66, s53, {t1}')
    a(f's_add_u32 s66, s66, {WS_FLAG + FL_H}')
    a(f's_add_u32 s53, s53, {WS_FLAG + FL_O}')
    a(f's_lshl_b32 {t0}, {mt}, 3')
    a(f's_add_u32 {t0}, {t0}, {n128}')
    a(f's_lshl_b32 s56, {t0}, 7')
    a(f's_add_u32 s56, s56, {WS_FLAG + FL_P}')
    a(f's_lshl_b32 {t1}, {kh}, 2')
    a(f's_add_u32 s80, s56, {t1}')
    a(f's_lshl_b32 {t0}, {t0}, 16')
    a(f's_add_u32 {t0}, {t0}, {WS_P}')
    a(f's_and_b32 {t1}, {t2}, 7')
    a(f's_lshl_b32 {t1}, {t1}, 12')
    a(f's_add_u32 {t0}, {t0}, {t1}')
    a(f's_lshl_b32 {t1}, {kh}, 15')
    a(f's_add_u32 s58, {t0}, {t1}')
    a(f's_xor_b32 {t1}, {t1}, 32768')
    a(f's_add_u32 s57, {t0}, {t1}')
    j = kh
    a(f's_and_b32 {j}, s2, 31')
    a(f's_lshl_b32 s70, {j}, 11')
    a(f's_add_u32 s70, s70, {WS_WF}')
    a(f's_lshl_b32 {t0}, {n128}, 4')
    a(f's_lshl_b32 {t1}, s87, 1')
    a(f's_add_u32 {t0}, {t0}, {t1}')
    a(f's_lshl_b32 s71, {j}, 7')
    a(f's_add_u32 s71, s71, {t0}')
    a('s_lshl_b32 s71, s71, 10')
    a(f's_add_u32 s71, s71, {WS_Q}')
    a(f's_mul_i32 s65, {t0}, 147456')
    a(f's_add_u32 {t1}, {j}, 112')
    a(f's_lshl_b32 {t1}, {t1}, 10')
    a(f's_add_u32 s65, s65, {t1}')
    a(f's_lshr_b32 {t0}, s87, 1')
    a(f's_and_b32 {t1}, s87, 1')
    a(f's_mul_i32 s72, {j}, 98304')
    a(f's_add_u32 s72, s72, {WS_KV}')
    a(f's_mul_i32 {t2}, {t0}, 3072')
    a(f's_add_u32 s72, s72, {t2}')
    a(f's_lshl_b32 {t2}, {t1}, 9')
    a(f's_add_u32 s73, s72, {t2}')
    a('s_add_u32 s73, s73, 1024')
    a(f's_lshl_b32 {t2}, {t1}, 11')
    a(f's_add_u32 s72, s72, {t2}')
    a(f's_lshr_b32 {t2}, {t0}, 1')
    a(f's_lshl_b32 {t2}, {t2}, 10')
    a(f's_and_b32 {t3}, {t0}, 1')
    a(f's_lshl_b32 {t3}, {t3}, 3')
    a(f's_add_u32 {t2}, {t2}, {t3}')
    a(f's_add_u32 {t2}, {t2}, {KVL}')
    a(f's_lshl_b32 {t3}, {t1}, 12')
    a(f's_add_u32 s74, {t2}, {t3}')
    a(f's_lshl_b32 {t3}, {t1}, 9')
    a(f's_add_u32 s75, {t2}, {t3}')
    a('s_add_u32 s75, s75, 2048')
    a(f's_lshl_b32 s79, {n128}, 7')
    a(f's_lshl_b32 {t1}, {j}, 2')
    a(f's_add_u32 s79, s79, {t1}')
    a(f's_add_u32 s79, s79, {WS_FLAG + FL_O}')
    a(f's_lshr_b32 {t0}, {j}, 1')
    a(f's_lshl_b32 s76, {t0}, 7')
    a(f's_add_u32 s76, s76, {WS_FLAG + FL_KV}')
    a(f's_lshr_b32 {t1}, {t0}, 1')
    a(f's_lshl_b32 {t1}, {t1}, 2')
    a(f's_and_b32 {t0}, {t0}, 1')
    a(f's_add_u32 {t1}, {t1}, {t0}')
    a(f's_add_u32 {t1}, {t1}, 2')
    a(f's_lshl_b32 {t1}, {t1}, 2')
    a(f's_add_u32 s67, {t1}, {WS_FLAG + FL_H}')
    a(f's_lshl_b32 {t0}, {n128}, 7')
    a(f's_add_u32 s64, s67, {t0}')
    return L


class P4:
    D = 6
    misc = 156

    def __init__(self, A, name, opts, typ):
        self.A, self.name, self.opts, self.typ = A, name, opts, typ
        self.vm, self.lg = Cnt(), Cnt()
        self.w0n = 0
        self.marks = {}
        m = self.misc
        self.vGo, self.vDW, self.vG, self.vPoll, self.vL16, self.vOut, self.vXW, self.vXR = [m + i for i in range(8)]
        assert self.vL16 == 160
        self.vRB = m + 8
        for s in range(2):
            for i in range(4):
                self.vm.issue(('W', s))

    def w0_begin(self, lab):
        self.A('s_cmp_lg_u32 s87, 0')
        self.A(f's_cbranch_scc1 {lab}')

    def mark(self, tag):
        self.w0n += 1
        self.marks[tag] = (self.vm.n, self.w0n)

    def w0cnt(self, tag):
        n, w = self.marks[tag]
        return min(63, self.vm.n - n + self.w0n - w)

    def spin(self, lab, load, test):
        A = self.A
        for t in test:
            A(t)
        A(f's_cbranch_scc1 {lab}_rdy')
        A(f's_mov_b32 s91, {SPIN}')
        A.label(f'{lab}_spin')
        A('s_sleep 2')
        for t in load:
            A(t)
        A('s_waitcnt vmcnt(0)')
        for t in test:
            A(t)
        A(f's_cbranch_scc1 {lab}_rdy')
        A('s_sub_u32 s91, s91, 1')
        A('s_cmp_lg_u32 s91, 0')
        A(f's_cbranch_scc1 {lab}_spin')
        A.flush_hazards()
        A.label(f'{lab}_rdy')

    def c_load(self, r):
        return [f'buffer_load_dword v{r}, off, s[28:31], 0 sc1']

    def c_issue(self, r):
        lab = f'{self.name}_ci'
        self.w0_begin(lab)
        for t in self.c_load(r):
            self.A(t)
        self.A.label(lab)
        self.mark('c')

    def pa_load(self, r):
        v = self.vL16
        return [f'v_lshrrev_b32 v{r}, 2, v{v}',
                f'v_and_b32 v{r}, 12, v{r}',
                f'buffer_load_dword v{r}, v{r}, s[40:43], s66 offen sc1']

    def c_check_pa_issue(self, rc, r):
        lab = f'{self.name}_cc'
        A = self.A
        self.w0_begin(f'{lab}_end')
        A(f's_waitcnt vmcnt({self.w0cnt("c")})')
        self.spin(lab, self.c_load(rc), [f'v_readfirstlane_b32 s90, v{rc}', 's_cmp_ge_u32 s90, 0x1000000'])
        for t in self.pa_load(r):
            A(t)
        A.label(f'{lab}_end')
        self.mark('pa')

    def pa_check(self, r):
        lab = f'{self.name}_pa'
        self.w0_begin(f'{lab}_rdy')
        self.A(f's_waitcnt vmcnt({self.w0cnt("pa")})')
        self.spin(lab, self.pa_load(r), [f'v_cmp_ne_u32 vcc, 0, v{r}', 's_cmp_eq_u64 vcc, -1'])

    def a_load(self, i):
        r = (i % self.D) * 8
        v = self.vL16
        if i < 28:
            d = (KSEQ[2 * i + 2] - KSEQ[2 * i]) * 1024 if i < 27 else 0
            return [f'buffer_load_dwordx4 a[{r}:{r + 3}], v{v}, s[40:43], s50 offen sc1',
                    f'buffer_load_dwordx4 a[{r + 4}:{r + 7}], v{v}, s[40:43], s51 offen sc1',
                    sadd('s50', d), sadd('s51', d)]
        return [f'buffer_load_dwordx4 a[{r}:{r + 3}], v{v}, s[40:43], s54 offen sc1',
                f'buffer_load_dwordx4 a[{r + 4}:{r + 7}], v{v}, s[40:43], s55 offen sc1',
                's_add_u32 s54, s54, 2048', 's_add_u32 s55, s55, 2048']

    def issue_a(self, i):
        for ins in self.a_load(i):
            self.A(ins)
        self.vm.issue(); self.vm.issue(('A', i))

    def issue_q(self):
        A, v = self.A, self.vL16
        for t in range(2):
            A(f'buffer_load_dwordx4 v[{128 + 4 * t}:{128 + 4 * t + 3}], v{v}, s[40:43], s70 offen offset:{t * 1024} sc1')
            self.vm.issue()
        for t in range(2):
            A(f'buffer_load_dwordx4 v[{136 + 4 * t}:{136 + 4 * t + 3}], v{v}, s[40:43], s71 offen offset:{t * 1024} sc1')
            self.vm.issue('q')

    def first_loads(self):
        for i in range(4):
            self.issue_a(i)

    def kv_loads(self, T0):
        vL16, vL8 = self.vL16, T0 + 7
        KV = 64
        S = []
        for p in range(8):
            S.append(('vm', [f'buffer_load_dwordx4 v[{KV + 6 * p}:{KV + 6 * p + 3}], v{vL16}, s[40:43], s72 offen sc1'], None))
            S.append(('vm', [f'buffer_load_dwordx2 v[{KV + 6 * p + 4}:{KV + 6 * p + 5}], v{vL8}, s[40:43], s73 offen sc1'] +
                      (['s_add_u32 s72, s72, 12288', 's_add_u32 s73, s73, 12288'] if p < 7 else []), ('kv', p)))
        return S

    def main(self):
        import gen_p3
        A, name, opts, vm, lg = self.A, self.name, self.opts, self.vm, self.lg
        D = self.D
        vGo, vDW, vG, vPoll, vL16, vOut, vXW, vXR, vRB = self.vGo, self.vDW, self.vG, self.vPoll, self.vL16, self.vOut, self.vXW, self.vXR, self.vRB
        acc3, accA, aA, aB, T0 = 0, 64, 0, 48, 144
        KCHK = int(opts.get('kchk', 5))
        R = dict(vL16=vL16, T0=T0, QUSE=KCHK + int(opts.get('quse', 2)), KVUSE=KCHK + int(opts.get('kvlat', 5)))
        NS3 = 14
        L = 152
        A(f'v_lshrrev_b32 v{L}, 4, v{vL16}')
        for ins in dw_pattern(vDW, L + 1):
            A(ins)
        A(f'v_lshrrev_b32 v{L + 1}, 2, v{L}')
        A(f'v_lshrrev_b32 v{L + 2}, 1, v{L + 1}')
        A(f'v_and_b32 v{L + 2}, 3, v{L + 2}')
        A(f'v_and_b32 v{L + 3}, 3, v{L}')
        A(f'v_lshlrev_b32 v{L + 3}, 3, v{L + 3}')
        A(f'v_lshl_add_u32 v{L + 3}, v{L + 1}, 7, v{L + 3}')
        A('s_lshl_b32 s90, s89, 13')
        A(f'v_add_u32 v{L + 3}, s90, v{L + 3}')
        for T in range(4):
            A(f'v_xor_b32 v{L + 1}, {T}, v{L + 2}')
            A(f'v_lshl_add_u32 v{vRB + T}, v{L + 1}, 5, v{L + 3}')
            A(f'v_add_u32 v{vRB + 4 + T}, 0x10000, v{vRB + T}')

        def dma(s, i):
            if s < NS3:
                return [f's_add_u32 m0, s62, {(s % 4) * 32768 + i * 8192}',
                        f'buffer_load_dwordx4 v{vDW}, s[16:19], s48 offen lds',
                        wstep(4 * s + i)]
            return [f's_add_u32 m0, s62, {(s % 4) * 32768 + i * 8192}',
                    f'buffer_load_dwordx4 v{vDW}, s[20:23], s49 offen lds',
                    f's_add_u32 s49, s49, {64 * 2048}']

        def stage_of(i):
            return i >> 1 if i < 28 else NS3 + ((i - 28) >> 2)

        NI = 44
        NST = 18

        def is_last(i):
            return i + 1 < NI and stage_of(i + 1) != stage_of(i)

        def b_reads(i, T):
            out = []
            slot = stage_of(i) % 4
            for a in range(2):
                base = vRB + (T & 3) + (4 if slot >= 2 else 0)
                if i < 28:
                    r = aB + T * 4 + 2 * a
                    off = (slot & 1) * 32768 + (i & 1) * 16384 + (T >> 2) * 4096 + a * 2048
                else:
                    m = i - 28
                    r = aB + (m & 1) * 16 + T * 4 + 2 * a
                    off = (slot & 1) * 32768 + (m & 3) * 8192 + a * 2048
                out.append(f'ds_read_b64_tr_b16 a[{r}:{r + 1}], v{base} offset:{off}')
            return out

        if self.typ == 'A':
            A('s_barrier')
        for T in range(8):
            for ins in b_reads(0, T):
                A(ins)
                lg.issue(('B', 0, T))
        for s in (2, 3):
            for i in range(4):
                for ins in dma(s, i):
                    A(ins)
                vm.issue(('W', s))
        A('s_lshl_b32 s63, s89, 12')
        A('s_lshl_b32 s90, s87, 12')
        A(f's_add_u32 s90, s90, {KVL}')
        A(f'v_add_u32 v{vXW}, s90, v{vL16}')
        A('s_xor_b32 s90, s90, 16384')
        A(f'v_add_u32 v{vXR}, s90, v{vL16}')
        A(f'v_and_b32 v{L + 1}, 15, v{L}')
        A(f'v_lshlrev_b32 v{vGo}, 2, v{L + 1}')
        A(f'v_lshrrev_b32 v{L + 2}, 4, v{L}')
        A(f'v_lshlrev_b32 v{L + 2}, 3, v{L + 2}')
        A(f'v_lshl_add_u32 v{L + 2}, v{L + 1}, 11, v{L + 2}')
        A(f'v_add_u32 v{vOut}, s59, v{L + 2}')
        A(f's_mov_b32 s96, {f2u(LOG2E)}')
        A('s_mov_b32 s78, s65')
        A(f'v_add_u32 v{T0 + 4}, s74, v{vL16}')
        A(f'v_lshrrev_b32 v{T0 + 5}, 1, v{L}')
        A(f'v_lshlrev_b32 v{T0 + 5}, 4, v{T0 + 5}')
        A(f'v_and_b32 v{T0 + 6}, 1, v{L}')
        A(f'v_lshl_add_u32 v{T0 + 5}, v{T0 + 6}, 2, v{T0 + 5}')
        A(f'v_add_u32 v{T0 + 5}, s75, v{T0 + 5}')
        A(f'v_add_u32 v{T0 + 6}, {KVL}, v{vL16}')
        A(f'v_lshlrev_b32 v{T0 + 7}, 3, v{L}')
        ts_stamp(A, opts, 32)

        noside = opts.get('no_side')
        side = [] if noside else gen_p3.side_stream(name, opts, R)
        st = dict(i=0, nbar=0, wantbar=None)
        E = A

        def emit_side(it, k):
            while k > 0 and st['i'] < len(side):
                x = side[st['i']]
                if isinstance(x, str):
                    E(x)
                    k -= 1
                elif x[0] == 'vm':
                    E(x[1]); vm.issue(x[2]); k -= 1
                elif x[0] == 'lg':
                    E(x[1]); lg.issue(x[2]); k -= 1
                elif x[0] == 'wvm':
                    A(f's_waitcnt vmcnt({min(63, vm.cnt(x[1]))})')
                elif x[0] == 'wlg':
                    A(f's_waitcnt lgkmcnt({min(15, lg.cnt(x[1]))})')
                elif x[0] == 'until':
                    if it < x[1]:
                        return
                elif x[0] == 'markbar':
                    st['wantbar'] = st['nbar'] + 1
                elif x[0] == 'waitbar':
                    if st['nbar'] < st['wantbar']:
                        return
                st['i'] += 1

        def signal(soff, lab):
            self.w0_begin(lab)
            A(f'v_mov_b32 v{L}, 3')
            A('s_mov_b64 exec, 1')
            A(f'buffer_store_dword v{L}, off, s[40:43], {soff} sc1')
            A('s_mov_b64 exec, -1')
            A.label(lab)
            self.w0n += 1

        def poll_load(r, soff, mask, ioff=0, thr=1):
            if mask == 'oh':
                return [f'v_lshrrev_b32 v{r}, 9, v{vL16}',
                        f'v_mul_u32_u24 v{r}, {FL_H - FL_O - 128}, v{r}',
                        f'v_lshrrev_b32 v{vG}, 2, v{vL16}',
                        f'v_add_u32 v{r}, v{r}, v{vG}',
                        f'buffer_load_dword v{r}, v{r}, s[40:43], {soff} offen sc1']
            if mask == 'q':
                return [f'v_mov_b32 v{r}, s64',
                        f'v_mov_b32 v{L + 1}, s67',
                        f'v_cmp_gt_u32 vcc, 0x200, v{vL16}',
                        f'v_cndmask_b32 v{r}, v{L + 1}, v{r}, vcc',
                        f'buffer_load_dword v{r}, v{r}, s[40:43], 0 offen sc1']
            return [f'v_lshrrev_b32 v{r}, 2, v{vL16}',
                    f'v_and_b32 v{r}, {mask * 4}, v{r}',
                    f'buffer_load_dword v{r}, v{r}, s[40:43], {soff} offen offset:{ioff} sc1']

        def poll_issue(tag, *a):
            lab = f'{name}_{tag}_pi'
            self.w0_begin(lab)
            for t in poll_load(*a):
                A(t)
            A.label(lab)
            self.mark(tag)

        def poll_check(tag, *a):
            lab = f'{name}_{tag}_pc'
            thr = a[4] if len(a) > 4 else 1
            self.w0_begin(f'{lab}_rdy')
            A(f's_waitcnt vmcnt({self.w0cnt(tag)})')
            self.spin(lab, poll_load(*a), [f'v_cmp_le_u32 vcc, {thr}, v{a[0]}', 's_cmp_eq_u64 vcc, -1'])

        OSIG = int(opts.get('osig', 19))
        OPOLL, OCHK = OSIG + 3, OSIG + 4
        PSIG = int(opts.get('psig', 34))
        PPOLL, PCHK = int(opts.get('ppoll', 37)), int(opts.get('pchk', 39))
        SIG = int(opts.get('sig', 1))
        QCHK = KCHK
        polls = {'h1': (-1, 1, (vPoll, 's66', 3, 16)),
                 'h2': (1, 3, (vPoll, 's66', 3, 32)),
                 'h3': (3, 5, (vPoll, 's66', 3, 48)),
                 'hh': (7, 9, (vPoll, 's66', 15, 0, 3)),
                 'p': (PPOLL, PCHK, (vPoll, 's56', 1))}
        if not noside:
            polls['k'] = (KCHK - 2, KCHK, (vG, 's76', 7))
            polls['o'] = (OPOLL, OCHK, (vPoll, 's53', 'oh'))
        agate = {4: 1, 8: 3, 12: 5, 16: 9, 28: OCHK}

        def a_ok(i, it):
            return all(it >= c for f, c in agate.items() if i >= f)
        for tag, (pi, pc, a) in polls.items():
            if pi < 0:
                poll_issue(tag, *a)
        XBAR = [PSIG, OSIG, SIG] + [v[1] for v in polls.values()]
        XLB = (29, 30)
        rate = int(opts.get('rate', 4))
        pend = []
        nexta = 4
        kvl = []
        RX = 96
        PL = 112
        for it in range(NI):
            s = stage_of(it)
            last = is_last(it)
            drain = last or it in XLB
            bar = drain or it in XBAR
            w = vm.cnt(('A', it))
            if last:
                w = min(w, vm.cnt(('W', s + 1)))
            if it == PSIG:
                w = min(w, vm.cnt('pst'))
            if it == SIG:
                w = min(w, vm.cnt('epi'))
            if it == OSIG and not noside:
                assert st['i'] == len(side), (st['i'], len(side))
                w = min(w, vm.cnt('ost'))
            if drain:
                A(f's_waitcnt vmcnt({min(w, 63)}) lgkmcnt(0)')
            else:
                A(f's_waitcnt vmcnt({min(w, 63)})')
            if it == 14:
                ts_stamp(A, opts, 33)
            if it == 28:
                ts_stamp(A, opts, 34)
            for tag, (pi, pc, a) in polls.items():
                if it == pc:
                    poll_check(tag, *a)
            if bar:
                A('s_barrier')
            if it == KCHK and not noside:
                kvl = self.kv_loads(T0)
            if it == QCHK and not noside:
                self.issue_q()
            if last:
                st['nbar'] += 1
                if s + 4 < NST:
                    pend += [(s + 4, i) for i in range(4)]
            if it == SIG:
                signal('s81', f'{name}_hs')
            if it == PSIG:
                signal('s80', f'{name}_ps')
            if it == OSIG and not noside:
                signal('s79', f'{name}_os')
            if it == 27:
                for T in range(8):
                    A(f'v_subrev_u32 v{vRB + T}, s63, v{vRB + T}')
            for tag, (pi, pc, a) in polls.items():
                if it == pi:
                    poll_issue(tag, *a)
            if it == OCHK + 1:
                A(f'buffer_load_dword v{vG}, v{vGo}, s[40:43], s52 offen sc1')
                vm.issue('g')
            ar = aA + (it % D) * 8
            extra = []
            if it == 28:
                extra = [None] * 2 + [('lg', [f'ds_write_b128 v{vXW}, v[{acc3 + (12 + q) * 4}:{acc3 + (12 + q) * 4 + 3}] offset:{q * 1024}']) for q in range(4)]
            if it == 29:
                extra = [('lg', [f'ds_read_b128 v[{RX + 4 * q}:{RX + 4 * q + 3}], v{vXR} offset:{q * 1024}']) for q in range(4)]
            if it == 30:
                for q in range(4):
                    c = acc3 + (4 + q) * 4
                    extra.append(('vm', [f'v_add_f32 v{c + r}, v{c + r}, v{RX + 4 * q + r}' for r in range(4)] + [
                                         f'buffer_store_dwordx4 v[{c}:{c + 3}], v{vL16}, s[40:43], s57 offen offset:{q * 1024} sc1'], 'pst'))
                extra += [('lg', [f'ds_write_b128 v{vXW}, v[{acc3 + (8 + q) * 4}:{acc3 + (8 + q) * 4 + 3}] offset:{q * 1024}']) for q in range(4)]
            if it == 31:
                extra = [('lg', [f'ds_read_b128 v[{RX + 4 * q}:{RX + 4 * q + 3}], v{vXR} offset:{q * 1024}'], 'x2') for q in range(4)]
            if it == 33:
                for q in range(4):
                    c = acc3 + q * 4
                    extra.append(('v', [f'v_add_f32 v{c + r}, v{c + r}, v{RX + 4 * q + r}' for r in range(4)]))
            if it == PCHK:
                extra = [('vm', [f'buffer_load_dwordx4 v[{PL + 4 * q}:{PL + 4 * q + 3}], v{vL16}, s[40:43], s58 offen offset:{q * 1024} sc1'], 'pld') for q in range(4)]

            def pop_extra():
                if extra:
                    x = extra.pop(0)
                    if x is None:
                        return
                    for ins in x[1]:
                        E(ins)
                    if x[0] == 'vm':
                        vm.issue(x[2])
                    elif x[0] == 'lg':
                        lg.issue(x[2] if len(x) > 2 else None)

            def pop_dma():
                if pend:
                    s2, i2 = pend.pop(0)
                    for ins in dma(s2, i2):
                        E(ins)
                    vm.issue(('W', s2))
            if it < 28:
                for T in range(8):
                    b = aB + T * 4
                    if not drain:
                        A(f's_waitcnt lgkmcnt({min(15, lg.cnt(("B", it, T)))})')
                    for u in range(2):
                        c = acc3 + (u * 8 + T) * 4
                        cin = '0' if it == 0 else f'v[{c}:{c + 3}]'
                        E(f'v_mfma_f32_16x16x32_bf16 v[{c}:{c + 3}], a[{b}:{b + 3}], a[{ar + 4 * u}:{ar + 4 * u + 3}], {cin}')
                        if u == 0:
                            emit_side(it, rate)
                        elif kvl:
                            x = kvl.pop(0)
                            for ins in x[1]:
                                E(ins)
                            vm.issue(x[2])
                    if it + 1 < 28 or T < 4:
                        for ins in b_reads(it + 1, T):
                            E(ins)
                            lg.issue(('B', it + 1, T))
                    if T in (1, 5):
                        pop_dma()
            else:
                m = it - 28
                for T in range(4):
                    b = aB + (m & 1) * 16 + T * 4
                    if not drain:
                        A(f's_waitcnt lgkmcnt({min(15, lg.cnt(("B", it, T)))})')
                    for u in range(2):
                        c = accA + (u * 4 + T) * 4
                        cin = '0' if m == 0 else f'v[{c}:{c + 3}]'
                        E(f'v_mfma_f32_16x16x32_bf16 v[{c}:{c + 3}], a[{b}:{b + 3}], a[{ar + 4 * u}:{ar + 4 * u + 3}], {cin}')
                        if u == 0 and it + 1 < NI:
                            for ins in b_reads(it + 1, T):
                                E(ins)
                                lg.issue(('B', it + 1, T))
                        pop_extra()
                    if T in (1, 3):
                        pop_dma()
            assert not extra
            k = 0
            while nexta <= it + D and nexta < NI and a_ok(nexta, it) and k < 2:
                self.issue_a(nexta)
                nexta += 1
                k += 1
        ts_stamp(A, opts, 35)
        t0, t1, omg = 128, 129, 130
        for T in range(4):
            A(f'ds_write_b128 v{vXW}, v[{accA + 16 + 4 * T}:{accA + 19 + 4 * T}] offset:{T * 1024}')
        g = vG
        A(f'v_sub_f32 v{omg}, 1.0, v{g}')
        A(f'v_cvt_pk_bf16_f32 v{omg}, v{omg}, v{omg}')
        A(f'v_lshlrev_b32 v{omg}, 16, v{omg}')
        A('s_waitcnt lgkmcnt(0)')
        A('s_barrier')
        for i in range(4):
            A(f'ds_read_b128 v[{RX + 4 * i}:{RX + 4 * i + 3}], v{vXR} offset:{i * 1024}')
        A('s_waitcnt vmcnt(0)')
        for T in range(4):
            for h in (0, 2):
                c = acc3 + 4 * T + h
                A(f'v_pk_add_f32 v[{c}:{c + 1}], v[{c}:{c + 1}], v[{PL + 4 * T + h}:{PL + 4 * T + h + 1}]')

        def rnd_scale(c, sc):
            A(f'v_cvt_pk_bf16_f32 v{t0}, v{c}, v{c + 1}')
            A(f'v_cvt_pk_bf16_f32 v{t1}, v{c + 2}, v{c + 3}')
            A(f'v_lshlrev_b32 v{c}, 16, v{t0}')
            A(f'v_and_b32 v{c + 1}, 0xffff0000, v{t0}')
            A(f'v_lshlrev_b32 v{c + 2}, 16, v{t1}')
            A(f'v_and_b32 v{c + 3}, 0xffff0000, v{t1}')
            for r in range(4):
                A(f'v_mul_f32 v{c + r}, v{sc}, v{c + r}')
            A(f'v_cvt_pk_bf16_f32 v{t0}, v{c}, v{c + 1}')
            A(f'v_cvt_pk_bf16_f32 v{t1}, v{c + 2}, v{c + 3}')
            A(f'v_lshlrev_b32 v{c}, 16, v{t0}')
            A(f'v_and_b32 v{c + 1}, 0xffff0000, v{t0}')
            A(f'v_lshlrev_b32 v{c + 2}, 16, v{t1}')
            A(f'v_and_b32 v{c + 3}, 0xffff0000, v{t1}')
        for T in range(4):
            rnd_scale(acc3 + 4 * T, omg)
        A('s_waitcnt lgkmcnt(0)')
        for T in range(4):
            cb = acc3 + T * 4
            ca = accA + T * 4
            for h in (0, 2):
                A(f'v_pk_add_f32 v[{ca + h}:{ca + h + 1}], v[{ca + h}:{ca + h + 1}], v[{RX + 4 * T + h}:{RX + 4 * T + h + 1}]')
            rnd_scale(ca, g)
            for r in range(4):
                A(f'v_add_f32 v{cb + r}, v{cb + r}, v{ca + r}')
            A(f'v_cvt_pk_bf16_f32 v{cb}, v{cb}, v{cb + 1}')
            A(f'v_cvt_pk_bf16_f32 v{cb + 1}, v{cb + 2}, v{cb + 3}')
            A(f'buffer_store_dwordx2 v[{cb}:{cb + 1}], v{vOut}, s[24:27], 0 offen offset:{T * 32}')
        ts_store(A, opts, 1, [39, 32, 33, 34, 35])
        ts_store(A, opts, 0, [36, 37, 4, 5, 6, 38])
```
